```python
import torch

def _softmax(x, axis=-1):
    return torch.softmax(x, dim=axis)

def _gelu(x):
    return torch.nn.functional.gelu(x, approximate='tanh')

def _silu(x):
    return torch.nn.functional.silu(x)

def _sigmoid(x):
    return torch.sigmoid(x)

def _layernorm(x, axis=-1, eps=1e-05):
    m = x.mean(dim=axis, keepdim=True)
    v = x.var(dim=axis, keepdim=True, unbiased=False)
    return (x - m) / torch.sqrt(v + eps)

def _scatter_add(tgt, idx, src, axis=0):
    return tgt.clone().index_add_(axis, idx, src)

def _segment_sum(src, seg, n):
    out = torch.zeros((n,) + src.shape[1:], dtype=src.dtype)
    return out.index_add_(0, seg, src)

def _pad(x, pw):
    flat = tuple((v for pair in reversed(pw) for v in pair))
    return torch.nn.functional.pad(x, flat)
kernel_name = 'adaLN_cond__spectral_gfnet__glu_gated_bilinear__prompt'

def setup_inputs():

    _w = lambda a: (lambda t: t.to(torch.bfloat16) if t.is_floating_point() else t)(torch.as_tensor(a))

    def _A_setup():
        B, S, D = (1, 2048, 576)
        Df = D // 2 + 1
        return {'x': _w((lambda *s: torch.randn(*s, dtype=torch.bfloat16) * 0.05)(B, S, D)), 'w_r': _w((lambda *s: torch.randn(*s, dtype=torch.bfloat16) * 3.2)(S, Df) * 0.02), 'w_i': _w((lambda *s: torch.randn(*s, dtype=torch.bfloat16) * 3.2)(S, Df) * 0.02)}
    _A_in = _A_setup()

    def _B_setup():
        B, S, D, F = (1, 2048, 576, 4608)
        return {'x': _w((lambda *s: torch.randn(*s, dtype=torch.bfloat16) * 0.05)(B, S, D)), 'w_gate': _w((lambda *s: torch.randn(*s, dtype=torch.bfloat16) * 0.4)(D, F) * D ** (-0.5)), 'w_up': _w((lambda *s: torch.randn(*s, dtype=torch.bfloat16) * 0.4)(D, F) * D ** (-0.5)), 'w_down': _w((lambda *s: torch.randn(*s, dtype=torch.bfloat16) * 0.4)(F, D) * F ** (-0.5))}
    _B_in = _B_setup()
    return {'A_x': _A_in['x'], 'A_w_r': _A_in['w_r'], 'A_w_i': _A_in['w_i'], 'B_x': _B_in['x'], 'B_w_gate': _B_in['w_gate'], 'B_w_up': _B_in['w_up'], 'B_w_down': _B_in['w_down'], 'c': _w((lambda *s: torch.randn(*s, dtype=torch.bfloat16) * 0.1)(1, 576) * 8.0), 'w_mod': _w((lambda *s: torch.randn(*s, dtype=torch.bfloat16) * 0.1)(576, 6 * 576) * 576 ** (-0.5) * 8.0)}

def reference(A_x, A_w_r, A_w_i, B_x, B_w_gate, B_w_up, B_w_down, c, w_mod):

    def _A_ref(x, w_r, w_i):
        B, S, D = x.shape
        X = (lambda x, axes=(-2, -1): torch.fft.rfft2(x.float(), dim=axes))(x, axes=(-2, -1))
        W = w_r + 1j * w_i
        X = X * W
        y = (lambda x, s, axes=(-2, -1): torch.fft.irfft2(x, s=s, dim=axes).to(torch.bfloat16))(X, (S, D), axes=(-2, -1))
        return y

    def _B_ref(x, w_gate, w_up, w_down):
        g = torch.einsum('bsd,df->bsf', x, w_gate)
        u = torch.einsum('bsd,df->bsf', x, w_up)
        h = g * u
        return torch.einsum('bsf,fd->bsd', h, w_down)
    x = A_x
    mod = (_silu(c) @ w_mod).reshape(c.shape[0], 6, 1, -1)
    sa, ca, ga, sb, cb, gb = (mod[:, 0].clone(), mod[:, 1].clone(), mod[:, 2].clone(), mod[:, 3].clone(), mod[:, 4].clone(), mod[:, 5].clone())
    h = _layernorm(x, axis=-1) * (1 + ca) + sa
    x = x + ga * _A_ref(h, A_w_r, A_w_i)
    h = _layernorm(x, axis=-1) * (1 + cb) + sb
    x = x + gb * _B_ref(h, B_w_gate, B_w_up, B_w_down)
    return x
```

```python
import re

def v(i, n=1):
    return f"v{i}" if n == 1 else f"v[{i}:{i+n-1}]"
def a(i, n=1):
    return f"a{i}" if n == 1 else f"a[{i}:{i+n-1}]"
def s(i, n=1):
    return f"s{i}" if n == 1 else f"s[{i}:{i+n-1}]"

_REG = re.compile(r'^(-|abs\()?([vas])(?:(\d+)|\[(\d+):(\d+)\])\)?$')
def regs_of(op):
    op = op.strip()
    if op in ('vcc',): return {('s', 'vcc')}
    if op in ('vcc_lo', 'vcc_hi'): return {('s', 'vcc')}
    if op == 'exec': return {('s', 'exec')}
    if op == 'm0': return {('s', 'm0')}
    op2 = op.replace('|', '')
    m = _REG.match(op2)
    if not m: return set()
    k = m.group(2)
    if m.group(3) is not None: lo = hi = int(m.group(3))
    else: lo, hi = int(m.group(4)), int(m.group(5))
    return {(k, i) for i in range(lo, hi + 1)}

TRANS = ('v_exp_f32', 'v_log_f32', 'v_rcp_f32', 'v_rsq_f32', 'v_sqrt_f32', 'v_sin_f32', 'v_cos_f32', 'v_rcp_iflag_f32')

class Ins:
    __slots__ = ('text', 'op', 'kind', 'dst', 'src', 'srcC', 'srcAB', 'passes', 'label', 'target', 'uncond', 'dpp',
                 'trans', 'wide_store_data', 'ldsdma', 'ws', 'sdwa', 'mask_src', 'end')
    def __init__(self, text):
        self.text = text
        self.label = None; self.target = None; self.uncond = False; self.end = False
        self.dst = set(); self.src = set(); self.srcC = set(); self.srcAB = set()
        self.passes = 0; self.dpp = False; self.trans = False; self.wide_store_data = set()
        self.ldsdma = False; self.ws = 1; self.sdwa = False
        t = text.split(';')[0].strip()
        if t.endswith(':'):
            self.kind = 'label'; self.label = t[:-1]; self.op = ''; self.ws = 0; return
        if t == '' or t.startswith('.'):
            self.kind = 'none'; self.op = ''; self.ws = 0; return
        parts = t.split(None, 1)
        op = parts[0]; self.op = op
        rest = parts[1] if len(parts) > 1 else ''
        ops = []; cur = ''; depth = 0
        for ch in rest:
            if ch in '[(': depth += 1
            if ch in '])': depth -= 1
            if ch == ',' and depth == 0: ops.append(cur.strip()); cur = ''
            else: cur += ch
        if cur.strip(): ops.append(cur.strip())
        mods = ''
        if ops:
            last = ops[-1].split(None, 1)
            if len(last) > 1 and not last[0].startswith('hwreg'):
                ops[-1] = last[0]; mods = last[1]
        R = [regs_of(o) for o in ops]
        if op == 's_nop':
            self.kind = 'salu'; self.ws = int(ops[0], 0) + 1; return
        if op.startswith('s_cbranch') or op == 's_branch':
            self.kind = 'salu'; self.target = ops[0]; self.uncond = (op == 's_branch'); return
        if op == 's_endpgm':
            self.kind = 'salu'; self.end = True; return
        if op.startswith('s_'):
            self.kind = 'smem' if op.startswith(('s_load', 's_buffer_load', 's_memtime', 's_memrealtime')) else 'salu'
            if op.startswith(('s_cmp', 's_waitcnt', 's_barrier', 's_setprio', 's_sleep', 's_bitcmp')):
                for r in R: self.src |= r
            else:
                if R: self.dst |= R[0]
                for r in R[1:]: self.src |= r
                if 'saveexec' in op: self.dst.add(('s', 'exec'))
            return
        if op.startswith('v_mfma'):
            self.kind = 'mfma'
            self.passes = 8 if '32x32x16' in op else 4 if '16x16x32' in op else 16
            self.dst = R[0]; self.srcAB = R[1] | R[2]; self.srcC = R[3]; self.src = self.srcAB | self.srcC
            return
        if op.startswith('v_'):
            self.kind = 'valu'
            base = op.replace('_e32', '').replace('_e64', '').replace('_dpp', '').replace('_sdwa', '')
            self.trans = base in TRANS
            self.dpp = op.endswith('_dpp') or 'row_' in mods or 'quad_perm' in mods
            self.sdwa = ('dst_sel:WORD' in mods or 'dst_sel:BYTE' in mods or ('op_sel:' in mods and not base.startswith('v_pk')))
            nd = 1
            if base in ('v_add_co_u32', 'v_sub_co_u32', 'v_addc_co_u32', 'v_subb_co_u32', 'v_subrev_co_u32', 'v_mad_u64_u32', 'v_div_scale_f32'):
                nd = 2
            for r in R[:nd]: self.dst |= r
            for r in R[nd:]: self.src |= r
            if base.startswith(('v_fmac', 'v_dot2c', 'v_pk_fmac')) or self.dpp or base == 'v_writelane_b32': self.src |= R[0]
            if base.startswith('v_permlane') and 'swap' in base:
                self.dst |= R[1]; self.src |= R[0]
            if base.startswith('v_cmpx'): self.dst.add(('s', 'exec'))
            return
        if op.startswith('ds_'):
            self.kind = 'ds'
            if op.startswith(('ds_read', 'ds_bpermute', 'ds_permute', 'ds_swizzle')) or '_rtn' in op:
                self.dst = R[0]
                for r in R[1:]: self.src |= r
            else:
                for r in R: self.src |= r
            return
        if op.startswith(('buffer_', 'global_', 'flat_')):
            self.kind = 'vmem'
            lds = (' lds' in (' ' + mods)) or '_lds_' in op
            if op.startswith(('buffer_wbl2', 'buffer_inv')): return
            if lds:
                self.ldsdma = True
                for r in R: self.src |= r
                self.src.add(('s', 'm0'))
            elif '_load' in op:
                self.dst = R[0]
                for r in R[1:]: self.src |= r
            else:
                for r in R: self.src |= r
                if 'x4' in op or 'x3' in op:
                    self.wide_store_data = R[0] if op.startswith('buffer_') else R[1]
                if 'atomic' in op and 'sc0' in mods:
                    self.dst = R[0]
            return
        raise ValueError('unknown instruction: ' + text)

def vec(rs): return {r for r in rs if r[0] in 'va'}
def sca(rs): return {r for r in rs if r[0] == 's'}

def need(p, c):
    n = 0
    if p.kind == 'valu':
        pv = vec(p.dst); ps = sca(p.dst)
        if c.kind == 'mfma' and pv & c.src: n = max(n, 2)
        if c.kind == 'mfma' and ('s', 'exec') in ps: n = max(n, 4)
        if c.kind == 'valu':
            if p.trans and not c.trans and pv & c.src: n = max(n, 1)
            if p.trans and pv & c.src: n = max(n, 1)
            if c.dpp and pv & c.src: n = max(n, 2)
            if c.op.startswith(('v_readlane', 'v_readfirstlane')) and pv & c.src: n = max(n, 1)
            if c.op.startswith('v_permlane') and pv & c.src: n = max(n, 2)
            if ps & c.src:
                n = max(n, 4 if c.op.startswith(('v_readlane', 'v_writelane', 'v_div_fmas')) else 2)
            if p.sdwa and pv & (c.src | c.dst): n = max(n, 1)
            if ('s', 'exec') in ps: n = max(n, 5)
        if c.kind == 'vmem' and ps & c.src: n = max(n, 5)
        if c.kind in ('salu', 'smem') and ps & c.src: n = max(n, 1)
    if p.kind in ('ds', 'vmem') and c.kind == 'valu' and c.dpp: pass
    if p.kind == 'mfma':
        P = p.passes
        if c.kind == 'mfma':
            if p.dst & c.srcAB: n = max(n, P + 4)
            if p.dst & c.srcC:
                if not (p.dst == c.srcC and c.passes == P): n = max(n, P + 2)
            elif p.dst & c.dst: n = max(n, P + 2)
        elif c.kind == 'valu':
            if p.dst & (c.src | c.dst): n = max(n, P + 4)
            if p.srcC & c.dst: n = max(n, P - 1)
        elif c.kind in ('ds', 'vmem'):
            if p.dst & (c.src | c.dst): n = max(n, P + 4)
    if p.kind == 'salu' and ('s', 'm0') in p.dst and c.kind == 'vmem' and c.ldsdma: n = max(n, 1)
    if p.kind == 'vmem' and p.wide_store_data:
        if c.kind in ('valu', 'mfma') and p.wide_store_data & c.dst: n = max(n, 2)
        elif p.wide_store_data & c.dst: n = max(n, 1)
    return n

def fix_hazards(lines):
    ins = [Ins(t) for t in lines]
    MAXD = 21
    total = 0
    while True:
        lab = {x.label: i for i, x in enumerate(ins) if x.kind == 'label'}
        preds = [[] for _ in ins]
        for i, x in enumerate(ins):
            if i + 1 < len(ins) and not x.uncond and not x.end: preds[i + 1].append(i)
            if x.target is not None:
                preds[lab[x.target]].append(i)
        changed = False
        out = []
        for i, c in enumerate(ins):
            if c.kind in ('label', 'none'):
                out.append(c); continue
            worst = 0
            stack = [(j, 0) for j in preds[i]]
            seen = {}
            while stack:
                j, d = stack.pop()
                if d >= MAXD: continue
                if seen.get(j, 99) <= d: continue
                seen[j] = d
                p = ins[j]
                if p.kind not in ('label', 'none'):
                    r = need(p, c) - d
                    if r > worst: worst = r
                for k in preds[j]: stack.append((k, d + p.ws))
            if worst > 0:
                changed = True
                total += worst
                while worst > 0:
                    k = min(worst, 16)
                    out.append(Ins(f"s_nop {k-1}")); worst -= k
                out.append(c)
                out.extend(ins[i+1:])
                break
            out.append(c)
        ins = out
        if not changed: break
    return [x.text for x in ins], total

def fix_hazards_fast(lines):
    ins = [Ins(t) for t in lines]
    MAXD = 21
    lab = {x.label: i for i, x in enumerate(ins) if x.kind == 'label'}
    preds = [[] for _ in ins]
    for i, x in enumerate(ins):
        if i + 1 < len(ins) and not x.uncond and not x.end: preds[i + 1].append(i)
        if x.target is not None: preds[lab[x.target]].append(i)
    pad = [0] * len(ins)
    for i, c in enumerate(ins):
        if c.kind in ('label', 'none'): continue
        worst = 0
        stack = [(j, 0) for j in preds[i]]
        seen = {}
        while stack:
            j, d = stack.pop()
            if d >= MAXD: continue
            if seen.get(j, 99) <= d: continue
            seen[j] = d
            p = ins[j]
            if p.kind not in ('label', 'none'):
                r = need(p, c) - d
                if r > worst: worst = r
            for k in preds[j]: stack.append((k, d + p.ws + pad[j]))
        pad[i] = worst
    out = []; total = 0
    for i, x in enumerate(ins):
        w = pad[i]; total += w
        while w > 0:
            k = min(w, 16); out.append(f"s_nop {k-1}"); w -= k
        out.append(x.text)
    return out, total

class Kern:
    def __init__(self, name, grid, block, lds, vgpr, agpr=0, sgpr=96):
        self.name = name; self.grid = grid; self.block = block; self.lds = lds
        self.vgpr = vgpr; self.agpr = agpr; self.sgpr = sgpr
        self.L = []; self.nlab = 0
    def __call__(self, fmt, *args):
        for ln in fmt.split('\n'):
            ln = ln.strip()
            if ln: self.L.append(ln)
    def label(self, base='L'):
        self.nlab += 1
        return f"{self.name}_{base}{self.nlab}"
    def place(self, lab): self.L.append(lab + ':')
    def srd(self, d, base, off, size):
        if off:
            self(f"s_add_u32 s{d}, s{base}, {off:#x}")
            self(f"s_addc_u32 s{d+1}, s{base+1}, 0")
        else:
            self(f"s_mov_b32 s{d}, s{base}")
            self(f"s_mov_b32 s{d+1}, s{base+1}")
        self(f"s_mov_b32 s{d+2}, {size:#x}")
        self(f"s_mov_b32 s{d+3}, 0x20000")
    def launch_line(self):
        return f"; @launch kernel={self.name} grid=({self.grid},1,1) block=({self.block},1,1) lds={self.lds}"
    def text(self):
        body, n = fix_hazards_fast(self.L)
        self.nops = n
        o = [f".globl {self.name}", ".p2align 8", f".type {self.name},@function", f"{self.name}:"]
        o += [(ln if ln.endswith(':') else '  ' + ln) for ln in body]
        o.append(f"{self.name}_eoc:")
        return '\n'.join(o)
    def desc(self):
        acc = (self.vgpr + 3) // 4 * 4
        nfv = acc + self.agpr if self.agpr else self.vgpr
        return '\n'.join([
            ".p2align 6", f".amdhsa_kernel {self.name}",
            f"  .amdhsa_next_free_vgpr {nfv}", f"  .amdhsa_next_free_sgpr {self.sgpr}",
            f"  .amdhsa_accum_offset {acc}", "  .amdhsa_group_segment_fixed_size 0",
            "  .amdhsa_kernarg_size 96", "  .amdhsa_user_sgpr_count 2",
            "  .amdhsa_user_sgpr_kernarg_segment_ptr 1", "  .amdhsa_system_sgpr_workgroup_id_x 1",
            "  .amdhsa_float_denorm_mode_32 3",
            ".end_amdhsa_kernel"])

def build(kerns, header, launches=None):
    launches = launches or kerns
    o = [header.rstrip('\n')]
    o += [k.launch_line() for k in launches]
    o += ['.amdgcn_target "amdgcn-amd-amdhsa--gfx950"', '.text']
    o += [k.text() for k in kerns]
    o += ['.section .rodata,"a"']
    o += [k.desc() for k in kerns]
    return '\n'.join(o) + '\n'
```

```python
import sys, struct
from asmlib import *

NAME = 'adaLN_cond__spectral_gfnet__glu_gated_bilinear__prompt'
KA_X, KA_WR, KA_WI, KA_BX, KA_WG, KA_WU, KA_WD, KA_C, KA_WM, KA_OUT, KA_DBG, KA_WS = [8*i for i in range(12)]
WS_MOD = 0;            SZ_MOD = 3456*4
WS_TAB = 0x10000;      SZ_TAB = 648*1024
WS_WT  = 0x100000;     SZ_WT = 289*8192
WS_T1  = 0x400000;     SZ_T = 288*8192
WS_T2  = 0x700000
WS_X1  = 0xA00000;     SZ_X = 2048*576*2
WS_H2  = 0xD00000
WS_P   = 0x1000000;    SZ_P = 2048*4608*2
WS_PART= 0x2400000;    SZ_PART = 4*2048*576*4

def f2u(x): return struct.unpack('<I', struct.pack('<f', x))[0]

def dpp_allreduce16(k, r, t):
    for sh in (8, 4, 2, 1):
        k(f"v_add_f32_dpp {v(r)}, {v(r)}, {v(r)} row_ror:{sh} row_mask:0xf bank_mask:0xf")

def rnd_bf16(k, r):
    k(f"v_cvt_pk_bf16_f32 {v(r)}, {v(r)}, {v(r)}")
    k(f"v_lshlrev_b32 {v(r)}, 16, {v(r)}")

def k0():
    NMOD, NWT, NTAB = 108, 160, 162
    k = Kern('k0_prep_kernel', NMOD+NWT+NTAB, 256, 2048, vgpr=72)
    Lwt, Ltab, Lend = k.label('wt'), k.label('tab'), k.label('end')
    k(f"s_load_dwordx2 s[4:5], s[0:1], {KA_WS}")
    k(f"s_load_dwordx4 s[8:11], s[0:1], {KA_WR}")
    k(f"s_load_dwordx4 s[12:15], s[0:1], {KA_C}")
    k(f"v_lshrrev_b32 v1, 6, v0")
    k(f"v_readfirstlane_b32 s3, v1")
    k(f"s_cmp_ge_u32 s2, {NMOD+NWT+NTAB}")
    k(f"s_cbranch_scc1 {Lend}")
    k(f"s_waitcnt lgkmcnt(0)")
    k(f"s_cmp_ge_u32 s2, {NMOD+NWT}")
    k(f"s_cbranch_scc1 {Ltab}")
    k(f"s_cmp_ge_u32 s2, {NMOD}")
    k(f"s_cbranch_scc1 {Lwt}")
    k.srd(16, 14, 0, 576*3456*2)
    k.srd(20, 12, 0, 1152)
    k.srd(24, 4, WS_MOD, SZ_MOD)
    k("v_and_b32 v1, 3, v0")
    k("v_lshrrev_b32 v2, 2, v0")
    k("v_mul_u32_u24 v3, 6912, v2")
    k("v_lshl_add_u32 v3, v1, 4, v3")
    k("v_lshlrev_b32 v4, 1, v2")
    k("s_lshl_b32 s28, s2, 6")
    for i in range(9):
        k(f"buffer_load_ushort v{48+i}, v4, s[20:23], 0 offen offset:{128*i}")
    for i in range(9):
        k(f"buffer_load_dwordx4 {v(8+4*i,4)}, v3, s[16:19], s28 offen")
        if i < 8: k(f"s_add_u32 s28, s28, {64*6912}")
    k("s_waitcnt vmcnt(9)")
    for i in range(9):
        r = 48+i
        k(f"v_lshlrev_b32 v{r}, 16, v{r}")
        k(f"v_mul_f32 v5, {f2u(-1.4426950408889634):#x}, v{r}")
        k(f"v_exp_f32 v5, v5")
        k(f"v_add_f32 v5, 1.0, v5")
        k(f"v_rcp_f32 v5, v5")
        k(f"v_mul_f32 v{r}, v{r}, v5")
        rnd_bf16(k, r)
    for j in range(8): k(f"v_mov_b32 v{60+j}, 0")
    for i in range(9):
        k(f"s_waitcnt vmcnt({8-i})")
        for j in range(4):
            k(f"v_lshlrev_b32 v5, 16, v{8+4*i+j}")
            k(f"v_and_b32 v6, 0xffff0000, v{8+4*i+j}")
            k(f"v_fmac_f32 v{60+2*j}, v5, v{48+i}")
            k(f"v_fmac_f32 v{60+2*j+1}, v6, v{48+i}")
    for sh in (4, 8):
        for j in range(8):
            k(f"v_add_f32_dpp v{60+j}, v{60+j}, v{60+j} row_ror:{sh} row_mask:0xf bank_mask:0xf")
    k("v_lshrrev_b32 v5, 4, v0")
    k("v_lshlrev_b32 v5, 7, v5")
    k("v_lshl_add_u32 v5, v1, 5, v5")
    k("ds_write_b128 v5, v[60:63]")
    k("ds_write_b128 v5, v[64:67] offset:16")
    k("s_waitcnt lgkmcnt(0)")
    k("s_barrier")
    k("s_cmp_lg_u32 s3, 0")
    k(f"s_cbranch_scc1 {Lend}")
    k("v_and_b32 v5, 31, v0")
    k("v_lshlrev_b32 v5, 2, v5")
    for i in range(8):
        k(f"ds_read2_b32 {v(8+2*i,2)}, v5 offset0:{64*i} offset1:{64*i+32}" if 64*i+32 < 256 else f"ds_read2_b32 {v(8+2*i,2)}, v6 offset0:{64*i-256} offset1:{64*i+32-256}")
        if i == 0: k("v_add_u32 v6, 1024, v5")
    k("s_waitcnt lgkmcnt(0)")
    for st in (8, 4, 2, 1):
        for i in range(st): k(f"v_add_f32 v{8+i}, v{8+i}, v{8+i+st}")
    rnd_bf16(k, 8)
    k("s_mul_i32 s29, s2, 3641")
    k("s_lshr_b32 s29, s29, 16")
    k("s_cmp_eq_u32 s29, 1")
    k("s_cselect_b32 s30, 1.0, 0")
    k("s_cmp_eq_u32 s29, 4")
    k("s_cselect_b32 s30, 1.0, s30")
    k("v_add_f32 v8, s30, v8")
    rnd_bf16(k, 8)
    k("s_lshl_b32 s28, s2, 7")
    k("buffer_store_dword v8, v5, s[24:27], s28 offen")
    k("s_endpgm")
    k.place(Lwt)
    k(f"s_sub_u32 s28, s2, {NMOD}")
    k("s_and_b32 s29, s28, 3")
    k("s_lshr_b32 s30, s28, 2")
    k("s_and_b32 s30, s30, 7")
    k("s_lshr_b32 s31, s28, 5")
    k.srd(16, 8, 0, 2048*578)
    k.srd(20, 10, 0, 2048*578)
    k.srd(24, 4, WS_WT, SZ_WT)
    k("v_and_b32 v1, 63, v0")
    k("s_lshl_b32 s32, s31, 6")
    k("v_add_u32 v1, s32, v1")
    k("v_lshlrev_b32 v2, 1, v1")
    k("s_lshl_b32 s33, s29, 4")
    k("s_lshl_b32 s34, s3, 2")
    k("s_add_u32 s33, s33, s34")
    k("s_lshl_b32 s34, s30, 8")
    k("s_add_u32 s33, s33, s34")
    k("s_mul_i32 s33, s33, 578")
    for r in range(4):
        for kk in range(4):
            k(f"buffer_load_ushort v{8+kk*4+r}, v2, s[16:19], s33 offen offset:{578*kk}")
            k(f"buffer_load_ushort v{24+kk*4+r}, v2, s[20:23], s33 offen offset:{578*kk}")
        if r < 3: k(f"s_add_u32 s33, s33, {64*578}")
    k("v_lshlrev_b32 v3, 13, v1")
    k("s_lshl_b32 s34, s29, 11")
    k("s_lshl_b32 s35, s30, 8")
    k("s_add_u32 s34, s34, s35")
    k("s_lshl_b32 s35, s3, 6")
    k("s_add_u32 s34, s34, s35")
    k("s_waitcnt vmcnt(0)")
    for i in range(16):
        k(f"v_lshl_or_b32 v{8+i}, v{24+i}, 16, v{8+i}")
    for kk in range(4):
        k(f"buffer_store_dwordx4 {v(8+4*kk,4)}, v3, s[24:27], s34 offen offset:{16*kk}")
    k("s_endpgm")
    k.place(Ltab)
    k(f"s_sub_u32 s28, s2, {NMOD+NWT}")
    k("s_mul_i32 s29, s28, 7282")
    k("s_lshr_b32 s29, s29, 16")
    k("s_mul_i32 s30, s29, 9")
    k("s_sub_u32 s30, s28, s30")
    Lc1 = k.label('c')
    k("s_cmp_lt_u32 s29, 9")
    k("s_cselect_b32 s31, 1, 0")
    k("s_cmp_gt_u32 s30, 4")
    k("s_cselect_b32 s32, 1, 0")
    k("s_and_b32 s31, s31, s32")
    k(f"s_cbranch_scc1 {Lend}")
    k("s_cmp_gt_u32 s29, 9")
    k("s_cselect_b32 s31, 1, 0")
    k("s_cmp_lt_u32 s30, 4")
    k("s_cselect_b32 s32, 1, 0")
    k("s_and_b32 s31, s31, s32")
    k(f"s_cbranch_scc1 {Lend}")
    k.srd(24, 4, WS_TAB, SZ_TAB)
    k("s_and_b32 s33, s3, 1")
    k("s_lshr_b32 s34, s3, 1")
    k("s_sub_u32 s35, 145, s33")
    k("v_and_b32 v1, 15, v0")
    k("s_lshl_b32 s36, s29, 4")
    k("v_add_u32 v1, s36, v1")
    k("v_bfe_u32 v2, v0, 4, 2")
    k("v_lshlrev_b32 v2, 3, v2")
    k("s_lshl_b32 s36, s30, 5")
    k("v_add_u32 v2, s36, v2")
    k("s_cmp_eq_u32 s34, 0")
    k("s_cselect_b64 s[40:41], -1, 0")
    k("s_cselect_b32 s37, 1.0, 0.5")
    k("s_movk_i32 s38, 144")
    k("s_movk_i32 s39, 288")
    for j in range(8):
        k(f"v_add_u32 v3, {j}, v2")
        k(f"v_cndmask_b32 v4, v3, v1, s[40:41]")
        k(f"v_cndmask_b32 v5, v1, v3, s[40:41]")
        k(f"v_cmp_le_u32 s[42:43], s35, v4")
        k(f"v_cmp_le_u32 s[44:45], s35, v5")
        k(f"v_subrev_u32 v6, s38, v4")
        k(f"v_cndmask_b32 v6, v4, v6, s[42:43]")
        k(f"v_lshl_add_u32 v6, v6, 1, s33")
        k(f"v_subrev_u32 v7, s38, v5")
        k(f"v_cmp_lt_u32 vcc, s38, v5")
        k(f"v_cndmask_b32 v7, v5, v7, vcc")
        k(f"v_mul_u32_u24 v20, v6, v7")
        k(f"v_cvt_f32_u32 v20, v20")
        k(f"v_mov_b32 v21, 0")
        k(f"v_mov_b32 v22, 0.25" if False else f"v_mov_b32 v22, {f2u(0.25):#x}")
        k(f"v_cndmask_b32 v21, v21, v22, s[42:43]")
        k(f"v_fmamk_f32 v20, v20, {f2u(1.0/576):#x}, v21")
        k(f"v_fract_f32 v20, v20")
        k(f"v_cos_f32 v20, v20")
        k(f"v_cmp_eq_u32 vcc, 0, v6")
        k(f"v_cmp_eq_u32 s[46:47], s39, v6")
        k(f"s_or_b64 vcc, vcc, s[46:47]")
        k(f"v_mul_f32 v21, s37, v20")
        k(f"v_cndmask_b32 v20, v20, v21, vcc")
        k(f"s_xor_b64 s[42:43], s[42:43], s[44:45]")
        k(f"v_cndmask_b32 v{8+j}, v20, 0, s[42:43]")
    for j in range(4):
        k(f"v_cvt_pk_bf16_f32 v{8+j}, v{8+2*j}, v{8+2*j+1}")
    k("s_mul_i32 s36, s3, 162")
    k("s_add_u32 s36, s36, s28")
    k("s_lshl_b32 s36, s36, 10")
    k("v_and_b32 v1, 63, v0")
    k("v_lshlrev_b32 v1, 4, v1")
    k("buffer_store_dwordx4 v[8:11], v1, s[24:27], s36 offen")
    k.place(Lend)
    k("s_endpgm")
    return k

def tab_off(tab, par, nt, ks): return (((tab*2+par)*18 + nt)*9 + ks)*1024

def ln_stats(k, X, n, mean, rstd, t):
    k(f"v_add_f32 v{mean}, v{X}, v{X+1}")
    k(f"v_add_f32 v{t}, v{X+2}, v{X+3}")
    for i in range(4, n, 2):
        k(f"v_add_f32 v{mean}, v{mean}, v{X+i}")
        k(f"v_add_f32 v{t}, v{t}, v{X+i+1}")
    k(f"v_add_f32 v{mean}, v{mean}, v{t}")
    dpp_allreduce16(k, mean, t)
    k(f"v_mul_f32 v{mean}, {f2u(1.0/576):#x}, v{mean}")
    for i in range(n):
        k(f"v_sub_f32 v{X+i}, v{X+i}, v{mean}")
    k(f"v_mul_f32 v{rstd}, v{X}, v{X}")
    k(f"v_mul_f32 v{t}, v{X+1}, v{X+1}")
    for i in range(2, n, 2):
        k(f"v_fmac_f32 v{rstd}, v{X+i}, v{X+i}")
        k(f"v_fmac_f32 v{t}, v{X+i+1}, v{X+i+1}")
    k(f"v_add_f32 v{rstd}, v{rstd}, v{t}")
    dpp_allreduce16(k, rstd, t)
    k(f"v_mul_f32 v{rstd}, {f2u(1.0/576):#x}, v{rstd}")
    rnd_bf16(k, rstd)
    k(f"v_add_f32 v{rstd}, {f2u(1e-5):#x}, v{rstd}")
    rnd_bf16(k, rstd)
    k(f"v_sqrt_f32 v{rstd}, v{rstd}")
    rnd_bf16(k, rstd)
    k(f"v_rcp_f32 v{rstd}, v{rstd}")
    k(f"v_mov_b32 v{t}, v{mean}")
    rnd_bf16(k, t)
    k(f"v_sub_f32 v{mean}, v{mean}, v{t}")
    k(f"v_mul_f32 v{mean}, v{mean}, v{rstd}")

def k1():
    HS = 2320
    AS = 592
    AOFF = 16*HS
    k = Kern('k1_rdft_kernel', 256, 256, AOFF + 16*AS, vgpr=256)
    Lend = k.label('end')
    k(f"s_load_dwordx2 s[4:5], s[0:1], {KA_WS}")
    k(f"s_load_dwordx2 s[6:7], s[0:1], {KA_X}")
    k("v_lshrrev_b32 v1, 6, v0")
    k("v_readfirstlane_b32 s3, v1")
    k("s_cmp_ge_u32 s2, 256")
    k(f"s_cbranch_scc1 {Lend}")
    k("s_lshr_b32 s28, s2, 7")
    k("s_and_b32 s29, s2, 127")
    k("v_lshrrev_b32 v1, 4, v0")
    k("v_and_b32 v2, 15, v0")
    k("s_and_b32 s30, s29, 3")
    k("s_lshl_b32 s30, s30, 9")
    k("s_lshr_b32 s31, s29, 2")
    k("s_add_u32 s30, s30, s31")
    k("s_mul_i32 s30, s30, 1152")
    k("v_mul_u32_u24 v3, 36864, v1")
    k("v_lshl_add_u32 v3, v2, 3, v3")
    k("v_lshlrev_b32 v4, 4, v2")
    k("v_and_b32 v5, 63, v0")
    k("v_lshlrev_b32 v5, 4, v5")
    k("s_waitcnt lgkmcnt(0)")
    k.srd(8, 6, 0, SZ_X)
    k.srd(12, 4, WS_MOD, SZ_MOD)
    k.srd(16, 4, WS_TAB, SZ_TAB)
    k.srd(20, 4, WS_T1, SZ_T)
    XR, SA, CA, B0, B2 = 8, 26, 62, 100, 180
    for i in range(9):
        k(f"buffer_load_dwordx2 {v(XR+2*i,2)}, v3, s[8:11], s30 offen offset:{128*i}")
    for i in range(9):
        k(f"buffer_load_dwordx4 {v(SA+4*i,4)}, v4, s[12:15], 0 offen offset:{256*i}")
    k("s_movk_i32 s32, 2304")
    for i in range(9):
        k(f"buffer_load_dwordx4 {v(CA+4*i,4)}, v4, s[12:15], s32 offen offset:{256*i}")
    k(f"s_mul_i32 s33, s28, {18*9*1024}")
    k(f"s_mul_i32 s34, s3, {9*1024}")
    k("s_add_u32 s34, s34, s33")
    def load5(dst, sreg):
        for i in range(5):
            if i == 4:
                k(f"s_add_u32 s{sreg}, s{sreg}, 4096")
                k(f"buffer_load_dwordx4 {v(dst+4*i,4)}, v5, s[16:19], s{sreg} offen")
            else:
                k(f"buffer_load_dwordx4 {v(dst+4*i,4)}, v5, s[16:19], s{sreg} offen offset:{1024*i}")
    for sl, tl in enumerate((1, 5)):
        k(f"s_add_u32 s35, s34, {tab_off(0,0,tl,0)}")
        load5(B0 + 40*sl, 35)
        k(f"s_add_u32 s35, s34, {tab_off(0,0,9+tl,4)}")
        load5(B0 + 40*sl + 20, 35)
    X = 220
    k("s_waitcnt vmcnt(38)")
    for i in range(18):
        k(f"v_lshlrev_b32 v{X+2*i}, 16, v{XR+i}")
        k(f"v_and_b32 v{X+2*i+1}, 0xffff0000, v{XR+i}")
    ln_stats(k, X, 36, 6, 7, 8)
    k("s_waitcnt vmcnt(20)")
    for i in range(36):
        k(f"v_fma_f32 v{X+i}, v{X+i}, v7, v6")
    for i in range(36):
        k(f"v_fma_f32 v{SA+i}, v{X+i}, v{CA+i}, v{SA+i}")
    Lx = k.label('x')
    k("s_cmp_lg_u32 s3, 0")
    k(f"s_cbranch_scc1 {Lx}")
    k(f"s_add_u32 s35, s33, {tab_off(0,0,0,0)}")
    load5(B2, 35)
    k(f"s_add_u32 s35, s33, {tab_off(0,0,9,0)}")
    for i in range(4):
        k(f"buffer_load_dwordx4 {v(B2+20+4*i,4)}, v5, s[16:19], s35 offen offset:{1024*i}")
    k(f"s_add_u32 s35, s35, 4096")
    load5(B2+36, 35)
    k.place(Lx)
    k(f"v_mul_u32_u24 v8, {HS}, v1")
    k("v_lshl_add_u32 v9, v2, 4, v8")
    for i in range(9):
        k(f"ds_write_b128 v9, {v(SA+4*i,4)} offset:{256*i}")
    k("v_lshl_add_u32 v10, v2, 2, v8")
    k("v_add_u32 v11, 1152, v10")
    k("v_lshlrev_b32 v12, 2, v2")
    k("v_sub_u32 v12, v8, v12")
    k(f"v_add_u32 v13, {1152-512}, v12")
    k(f"v_add_u32 v12, {2304-512}, v12")
    k("v_cmp_eq_u32 vcc, 0, v2")
    k(f"v_add_u32 v14, 512, v12")
    k(f"v_add_u32 v15, {144*4}, v8")
    k("v_cndmask_b32 v14, v14, v15, vcc")
    k(f"v_add_u32 v15, {432*4}, v8")
    k("v_cndmask_b32 v15, v11, v15, vcc")
    A_, B_, C_, E_ = CA, CA+9, CA+18, CA+27
    A_, B_, C_, E_ = 62, 72, 82, 16
    k("s_waitcnt lgkmcnt(0)")
    k(f"ds_read_b32 v{A_+8}, v10")
    k(f"ds_read_b32 v{B_+8}, v14")
    k(f"ds_read_b32 v{C_+8}, v13 offset:512")
    k(f"ds_read_b32 v{E_+8}, v15")
    def idx(base, i): return base+8 if i == 0 else base+i-1
    for p in range(4):
        i = 1+2*p
        k(f"ds_read2_b32 {v(A_+2*p,2)}, v10 offset0:{16*i} offset1:{16*(i+1)}")
        k(f"ds_read2_b32 {v(B_+2*p,2)}, v12 offset0:{128-16*i} offset1:{128-16*(i+1)}")
        k(f"ds_read2_b32 {v(C_+2*p,2)}, v13 offset0:{128-16*i} offset1:{128-16*(i+1)}")
        k(f"ds_read2_b32 {v(E_+2*p,2)}, v11 offset0:{16*i} offset1:{16*(i+1)}")
        if p == 1: k("s_waitcnt lgkmcnt(4)")
    k("s_cmp_eq_u32 s28, 0")
    k("s_cselect_b32 s36, 1.0, -1.0")
    k(f"v_mul_u32_u24 v9, {AS}, v1")
    k("v_lshl_add_u32 v9, v2, 1, v9")
    k("s_waitcnt lgkmcnt(0)")
    for i in range(9):
        a_, b_, c_, e_ = idx(A_, i), idx(B_, i), idx(C_, i), idx(E_, i)
        T = 26 + 4*(i % 4)
        k(f"v_fma_f32 v{T}, s36, v{c_}, v{a_}")
        k(f"v_fma_f32 v{T+1}, s36, v{e_}, v{b_}")
        k(f"v_fma_f32 v{T+2}, -s36, v{c_}, v{a_}")
        k(f"v_fma_f32 v{T+3}, -s36, v{e_}, v{b_}")
        k(f"v_sub_f32 v{T+2}, v{T+2}, v{T+3}")
        k(f"v_add_f32 v{T+3}, v{T}, v{T+1}")
        if i == 0:
            k(f"v_cndmask_b32 v{T+3}, v{T+3}, v{T}, vcc")
            k(f"v_cndmask_b32 v{T+2}, v{T+2}, v{T+1}, vcc")
        k(f"v_cvt_pk_bf16_f32 v{44+i}, v{T+3}, v{T+2}")
        k(f"ds_write_b16 v9, v{44+i} offset:{AOFF+32*i}")
        k(f"ds_write_b16_d16_hi v9, v{44+i} offset:{AOFF+288+32*i}")
    k(f"v_mul_u32_u24 v9, {AS}, v2")
    k("v_bfe_u32 v10, v0, 4, 2")
    k("v_lshl_add_u32 v9, v10, 4, v9")
    k("s_waitcnt lgkmcnt(0)")
    k("s_barrier")
    AF = 60
    for ks in range(9):
        k(f"ds_read_b128 {v(AF+4*ks,4)}, v9 offset:{AOFF+64*ks}")
    k("v_lshlrev_b32 v11, 13, v2")
    k("v_lshl_add_u32 v11, v10, 4, v11")
    k(f"s_mul_i32 s37, s28, {144*8192}")
    k("s_lshl_b32 s38, s29, 6")
    k("s_add_u32 s37, s37, s38")
    k("s_lshl_b32 s38, s3, 17")
    k("s_add_u32 s38, s38, s37")
    k("s_waitcnt vmcnt(0) lgkmcnt(0)")
    def tile(B, acc, imks):
        for i in range(5):
            k(f"v_mfma_f32_16x16x32_bf16 {v(acc,4)}, {v(AF+4*i,4)}, {v(B+4*i,4)}, {'0' if i == 0 else v(acc,4)}")
        for i, ks in enumerate(imks):
            k(f"v_mfma_f32_16x16x32_bf16 {v(acc+4,4)}, {v(AF+4*ks,4)}, {v(B+20+4*i,4)}, {'0' if i == 0 else v(acc+4,4)}")
    def fin(acc, sreg):
        for i in range(4):
            k(f"v_cvt_pk_bf16_f32 v{acc+i}, v{acc+2*i}, v{acc+2*i+1}")
        k(f"buffer_store_dwordx4 {v(acc,4)}, v11, s[20:23], s{sreg} offen")
    tile(B0, 16, range(4, 9))
    tile(B0+40, 24, range(4, 9))
    k(f"s_add_u32 s39, s38, {1*16*8192}")
    k(f"s_add_u32 s40, s38, {5*16*8192}")
    fin(16, 39); fin(24, 40)
    k("s_cmp_lg_u32 s3, 0")
    k(f"s_cbranch_scc1 {Lend}")
    tile(B2, 32, range(0, 9))
    fin(32, 37)
    k.place(Lend)
    k("s_endpgm")
    return k

def k2():
    k = Kern('k2_sfft_kernel', 289, 256, 8192, vgpr=168)
    Lend = k.label('end')
    k(f"s_load_dwordx2 s[4:5], s[0:1], {KA_WS}")
    k("v_lshrrev_b32 v1, 6, v0")
    k("v_readfirstlane_b32 s3, v1")
    k("s_cmp_ge_u32 s2, 289")
    k(f"s_cbranch_scc1 {Lend}")
    k("s_cmp_eq_u32 s2, 288")
    k("s_cselect_b32 s28, 0, s2")
    k("s_lshl_b32 s28, s28, 13")
    k("s_lshl_b32 s29, s2, 1")
    k("s_sub_u32 s30, s29, 287")
    k("s_cmp_lt_u32 s2, 144")
    k("s_cselect_b32 s29, s29, s30")
    k("s_min_u32 s29, s29, 288")
    k("s_lshl_b32 s29, s29, 13")
    k("s_lshl_b32 s30, s3, 11")
    k("s_add_u32 s29, s29, s30")
    k("v_and_b32 v1, 15, v0")
    k("v_bfe_u32 v2, v0, 4, 2")
    k("v_lshlrev_b32 v3, 8, v1")
    k("v_lshl_add_u32 v3, v2, 4, v3")
    k("v_and_b32 v4, 63, v0")
    k("v_lshlrev_b32 v4, 4, v4")
    k("s_add_u32 s31, s28, 4096")
    k("s_waitcnt lgkmcnt(0)")
    k.srd(8, 4, WS_T1, SZ_T)
    k.srd(12, 4, WS_WT, SZ_WT)
    k.srd(16, 4, WS_T2, SZ_T)
    DIN, WW, F64, F32, TW1, TW2, ACC, TMP = 8, 40, 48, 72, 96, 112, 128, 144
    for mt in range(2):
        for t in range(4):
            k(f"buffer_load_dwordx4 {v(DIN+16*mt+4*t,4)}, v3, s[8:11], s{28 if mt == 0 else 31} offen offset:{64*t}")
    for mt in range(2):
        k(f"buffer_load_dwordx4 {v(WW+4*mt,4)}, v4, s[12:15], s29 offen offset:{1024*mt}")
    k("s_lshl_b32 s32, s3, 4")
    k("v_add_u32 v5, s32, v1")
    k("v_cvt_f32_u32 v5, v5")
    k("v_lshlrev_b32 v6, 2, v2")
    k("v_cvt_f32_u32 v6, v6")
    k("v_cvt_f32_u32 v7, v1")
    def mat(dst, lane_f, lane_add, k_add, N):
        T = TMP
        k(f"v_add_f32 v{T+8}, {f2u(float(lane_add)):#x}, v{lane_f}")
        k(f"v_mul_f32 v{T+8}, {f2u(1.0/N):#x}, v{T+8}")
        for j in range(4):
            k(f"v_add_f32 v{T+9}, {f2u(float(k_add+j)):#x}, v6")
            k(f"v_mul_f32 v{T+9}, v{T+9}, v{T+8}")
            k(f"v_fract_f32 v{T+9}, v{T+9}")
            k(f"v_cos_f32 v{T+j}, v{T+9}")
            k(f"v_sin_f32 v{T+4+j}, v{T+9}")
        k(f"v_cvt_pk_bf16_f32 v{dst+2}, v{T}, v{T+1}")
        k(f"v_cvt_pk_bf16_f32 v{dst+3}, v{T+2}, v{T+3}")
        k(f"v_cvt_pk_bf16_f32 v{dst+4}, v{T+4}, v{T+5}")
        k(f"v_cvt_pk_bf16_f32 v{dst+5}, v{T+6}, v{T+7}")
        k(f"v_xor_b32 v{dst}, 0x80008000, v{dst+4}")
        k(f"v_xor_b32 v{dst+1}, 0x80008000, v{dst+5}")
    for t in range(4): mat(F64+6*t, 5, 0, 16*t, 64)
    for a_ in range(2):
        for b_ in range(2): mat(F32+6*(2*a_+b_), 7, 16*a_, 16*b_, 32)
    k(f"v_mul_f32 v{TMP+8}, {f2u(1.0/2048):#x}, v5")
    for mt in range(2):
        for r in range(4):
            k(f"v_add_f32 v{TMP+9}, {f2u(float(16*mt+r)):#x}, v6")
            k(f"v_mul_f32 v{TMP+9}, v{TMP+9}, v{TMP+8}")
            k(f"v_cos_f32 v{TW1+(mt*4+r)*2}, v{TMP+9}")
            k(f"v_sin_f32 v{TW1+(mt*4+r)*2+1}, v{TMP+9}")
    k("v_cvt_f32_u32 v160, s32")
    k("v_add_f32 v160, v160, v6")
    for nt in range(2):
        k(f"v_add_f32 v{TMP+8}, {f2u(float(16*nt)):#x}, v7")
        k(f"v_mul_f32 v{TMP+8}, {f2u(1.0/2048):#x}, v{TMP+8}")
        for r in range(4):
            k(f"v_add_f32 v{TMP+9}, {f2u(float(r)):#x}, v160")
            k(f"v_mul_f32 v{TMP+9}, v{TMP+9}, v{TMP+8}")
            k(f"v_cos_f32 v{TW2+(nt*4+r)*2}, v{TMP+9}")
            k(f"v_sin_f32 v{TW2+(nt*4+r)*2+1}, v{TMP+9}")
    k("s_waitcnt vmcnt(2)")
    Ln, Lz = k.label('norm'), k.label('zero')
    k("s_cmp_lg_u32 s28, 0")
    k(f"s_cbranch_scc1 {Ln}")
    k("s_cmp_eq_u32 s2, 0")
    k(f"s_cbranch_scc1 {Lz}")
    for f in range(8):
        k(f"v_mov_b32 v{DIN+4*f}, v{DIN+4*f+2}")
        k(f"v_mov_b32 v{DIN+4*f+1}, v{DIN+4*f+3}")
    k.place(Lz)
    for f in range(8):
        k(f"v_mov_b32 v{DIN+4*f+2}, 0")
        k(f"v_mov_b32 v{DIN+4*f+3}, 0")
    k.place(Ln)
    def mf(acc, A, B, first):
        k(f"v_mfma_f32_16x16x32_bf16 {v(acc,4)}, {v(A,4)}, {v(B,4)}, {'0' if first else v(acc,4)}")
    RE = lambda m: m+2
    IM = lambda m: m
    for t in range(4):
        for mt in range(2):
            mf(ACC+8*mt, DIN+16*mt+4*t, RE(F64+6*t), t == 0)
            mf(ACC+8*mt+4, DIN+16*mt+4*t, IM(F64+6*t), t == 0)
    def twiddle(TW, dst):
        for tl in range(2):
            for r in range(4):
                re, im, c_, s_ = ACC+8*tl+r, ACC+8*tl+4+r, TW+(tl*4+r)*2, TW+(tl*4+r)*2+1
                k(f"v_mul_f32 v{TMP+r}, v{re}, v{c_}")
                k(f"v_mul_f32 v{TMP+4+r}, v{im}, v{c_}")
                k(f"v_fmac_f32 v{TMP+r}, v{im}, v{s_}")
                k(f"v_fma_f32 v{TMP+4+r}, -v{re}, v{s_}, v{TMP+4+r}")
            for i in range(4):
                k(f"v_cvt_pk_bf16_f32 v{dst+4*tl+i}, v{TMP+2*i}, v{TMP+2*i+1}")
    D2 = DIN
    twiddle(TW1, D2)
    for mt in range(2):
        for mo in range(2):
            mf(ACC+8*mo, RE(F32+6*(2*mo+mt)), D2+4*mt, mt == 0)
            mf(ACC+8*mo+4, IM(F32+6*(2*mo+mt)), D2+4*mt, mt == 0)
    k("s_waitcnt vmcnt(0)")
    D3 = DIN+8
    for tl in range(2):
        for r in range(4):
            re, im = ACC+8*tl+r, ACC+8*tl+4+r
            k(f"v_lshlrev_b32 v{TMP+8}, 16, v{WW+4*tl+r}")
            k(f"v_and_b32 v{TMP+9}, 0xffff0000, v{WW+4*tl+r}")
            k(f"v_mul_f32 v{TMP+r}, v{re}, v{TMP+8}")
            k(f"v_mul_f32 v{TMP+4+r}, v{im}, v{TMP+8}")
            k(f"v_fma_f32 v{TMP+r}, -v{im}, v{TMP+9}, v{TMP+r}")
            k(f"v_fma_f32 v{TMP+4+r}, -v{re}, v{TMP+9}, -v{TMP+4+r}")
        for i in range(4):
            k(f"v_cvt_pk_bf16_f32 v{D3+4*tl+i}, v{TMP+2*i}, v{TMP+2*i+1}")
    for mt in range(2):
        for nt in range(2):
            mf(ACC+8*nt, D3+4*mt, RE(F32+6*(2*nt+mt)), mt == 0)
            mf(ACC+8*nt+4, D3+4*mt, IM(F32+6*(2*nt+mt)), mt == 0)
    D4 = DIN+16
    twiddle(TW2, D4)
    k("v_add_u32 v5, s30, v4")
    k(f"ds_write_b128 v5, {v(D4,4)}")
    k(f"ds_write_b128 v5, {v(D4+4,4)} offset:1024")
    k("s_waitcnt lgkmcnt(0)")
    k("s_barrier")
    for t in range(4):
        for nt in range(2):
            k(f"ds_read_b128 {v(DIN+16*nt+4*t,4)}, v4 offset:{2048*t+1024*nt}")
    for t in range(4):
        k(f"s_waitcnt lgkmcnt({6-2*t})")
        for nt in range(2):
            mf(ACC+8*nt, RE(F64+6*t), DIN+16*nt+4*t, t == 0)
            mf(ACC+8*nt+4, IM(F64+6*t), DIN+16*nt+4*t, t == 0)
    k("s_lshl_b32 s33, s3, 6")
    k("s_add_u32 s33, s33, s28")
    k("s_add_u32 s34, s33, 4096")
    for nt in range(2):
        k(f"v_cvt_pk_bf16_f32 v{TMP+4*nt}, v{ACC+8*nt}, v{ACC+8*nt+1}")
        k(f"v_cvt_pk_bf16_f32 v{TMP+4*nt+1}, v{ACC+8*nt+2}, v{ACC+8*nt+3}")
        k(f"v_cvt_pk_bf16_f32 v{TMP+4*nt+2}, -v{ACC+8*nt+4}, -v{ACC+8*nt+5}")
        k(f"v_cvt_pk_bf16_f32 v{TMP+4*nt+3}, -v{ACC+8*nt+6}, -v{ACC+8*nt+7}")
    Ls = k.label('spec')
    k("s_cmp_eq_u32 s28, 0")
    k(f"s_cbranch_scc1 {Ls}")
    k(f"buffer_store_dwordx4 {v(TMP,4)}, v3, s[16:19], s33 offen")
    k(f"buffer_store_dwordx4 {v(TMP+4,4)}, v3, s[16:19], s34 offen")
    k("s_endpgm")
    k.place(Ls)
    k("s_cmp_eq_u32 s2, 288")
    k("s_cselect_b32 s35, 8, 0")
    k("s_add_u32 s33, s33, s35")
    k("s_add_u32 s34, s34, s35")
    k(f"buffer_store_dwordx2 {v(TMP,2)}, v3, s[16:19], s33 offen")
    k(f"buffer_store_dwordx2 {v(TMP+4,2)}, v3, s[16:19], s34 offen")
    k.place(Lend)
    k("s_endpgm")
    return k

def k3():
    HS = 2320
    YOFF = 18432
    k = Kern('k3_irdft_kernel', 128, 576, YOFF + 16*HS, vgpr=168)
    Lend, Lnr = k.label('end'), k.label('nr')
    k(f"s_load_dwordx2 s[4:5], s[0:1], {KA_WS}")
    k(f"s_load_dwordx2 s[6:7], s[0:1], {KA_X}")
    k("v_lshrrev_b32 v1, 6, v0")
    k("v_readfirstlane_b32 s3, v1")
    k("s_cmp_ge_u32 s2, 128")
    k(f"s_cbranch_scc1 {Lend}")
    k("v_and_b32 v5, 63, v0")
    k("v_lshrrev_b32 v1, 2, v5")
    k("v_lshlrev_b32 v1, 13, v1")
    k("v_and_b32 v2, 3, v0")
    k("v_lshl_add_u32 v1, v2, 4, v1")
    k("v_lshlrev_b32 v5, 4, v5")
    k("s_lshl_b32 s28, s3, 18")
    k("s_lshl_b32 s29, s2, 6")
    k("s_add_u32 s28, s28, s29")
    k(f"s_add_u32 s29, s28, {16*8192 - 1024}")
    k("s_lshl_b32 s30, s3, 11")
    k("s_mov_b32 m0, s30")
    k("s_waitcnt lgkmcnt(0)")
    k.srd(8, 4, WS_T2, SZ_T)
    k.srd(16, 4, WS_TAB, SZ_TAB)
    k("buffer_load_dwordx4 v1, s[8:11], s28 offen lds")
    k("buffer_load_dwordx4 v1, s[8:11], s29 offen offset:1024 lds")
    B0, BX, AF, ACC = 8, 88, 104, 140
    k(f"s_mul_i32 s34, s3, {9*1024}")
    def load5(dst, sreg):
        for i in range(5):
            if i == 4:
                k(f"s_add_u32 s{sreg}, s{sreg}, 4096")
                k(f"buffer_load_dwordx4 {v(dst+4*i,4)}, v5, s[16:19], s{sreg} offen")
            else:
                k(f"buffer_load_dwordx4 {v(dst+4*i,4)}, v5, s[16:19], s{sreg} offen offset:{1024*i}")
    for par in range(2):
        k(f"s_add_u32 s35, s34, {tab_off(1,par,0,0)}")
        load5(B0+40*par, 35)
        k(f"s_add_u32 s35, s34, {tab_off(1,par,9,4)}")
        load5(B0+40*par+20, 35)
    k("v_bfe_u32 v3, v0, 4, 2")
    k("v_bfe_u32 v4, v0, 2, 2")
    k("v_lshl_add_u32 v4, v3, 3, v4")
    k("v_lshlrev_b32 v4, 6, v4")
    k("v_lshl_add_u32 v4, v2, 4, v4")
    k("v_cmp_le_u32 vcc, 2, v3")
    k(f"v_add_u32 v6, {128*64}, v4")
    k(f"v_add_u32 v7, {(128-144)*64+8 & 0xffffffff:#x}, v4")
    k("v_cndmask_b32 v6, v6, v7, vcc")
    k("s_waitcnt vmcnt(20)")
    Lx = k.label('x')
    k("s_cmp_lg_u32 s3, 0")
    k(f"s_cbranch_scc1 {Lx}")
    k(f"s_mov_b32 s35, {tab_off(1,0,9,0)}")
    for i in range(4):
        k(f"buffer_load_dwordx4 {v(BX+4*i,4)}, v5, s[16:19], s35 offen offset:{1024*i}")
    k.place(Lx)
    k("s_barrier")
    def mf(acc, A, B, first):
        k(f"v_mfma_f32_16x16x32_bf16 {v(acc,4)}, {v(A,4)}, {v(B,4)}, {'0' if first else v(acc,4)}")
    for par in (1, 0):
        for ks in range(9):
            for hh in range(2):
                if ks == 4:
                    k(f"ds_read_b64_tr_b16 {v(AF+4*ks+2*hh,2)}, v6 offset:{par*144*64 + 4*hh*64}")
                else:
                    part = 1 if ks > 4 else 0
                    k(f"ds_read_b64_tr_b16 {v(AF+4*ks+2*hh,2)}, v4 offset:{par*144*64 + (32*ks+4*hh-144*part)*64 + 8*part}")
            if ks == 5: k("s_waitcnt lgkmcnt(4)")
        k("s_waitcnt vmcnt(0) lgkmcnt(0)")
        for i in range(5):
            mf(ACC+4*par, AF+4*i, B0+40*par+4*i, i == 0)
            mf(ACC+8+4*par, AF+4*(4+i), B0+40*par+20+4*i, i == 0)
    Ly = k.label('y')
    k("s_cmp_lg_u32 s3, 0")
    k(f"s_cbranch_scc1 {Ly}")
    for i in range(4):
        mf(ACC+8, AF+4*i, BX+4*i, False)
    k.place(Ly)
    k("v_and_b32 v1, 15, v0")
    k("s_lshl_b32 s31, s3, 4")
    k("v_add_u32 v1, s31, v1")
    k("v_cmp_eq_u32 vcc, 0, v1")
    k("v_lshlrev_b32 v1, 2, v1")
    k(f"v_mul_u32_u24 v2, {4*HS}, v3")
    k("v_cndmask_b32 v8, 1.0, 0, vcc" if False else "v_mov_b32 v8, 1.0")
    k("v_cndmask_b32 v8, v8, 0, vcc" if False else "v_cndmask_b32_e64 v8, 1.0, 0, vcc")
    k("v_cndmask_b32_e64 v9, -1.0, 1.0, vcc")
    k("v_add_u32 v10, v2, v1")
    k("v_sub_u32 v11, v2, v1")
    k("v_add_u32 v12, 1152, v11")
    k("v_add_u32 v11, 2304, v11")
    k("v_add_u32 v13, 1152, v10")
    k(f"v_add_u32 v14, {144*4}, v2")
    k("v_cndmask_b32 v11, v11, v14, vcc")
    k(f"v_add_u32 v14, {432*4}, v2")
    k("v_cndmask_b32 v13, v13, v14, vcc")
    for r in range(4):
        T = 16 + 8*r
        A_, B_, C_, D_ = ACC+r, ACC+4+r, ACC+8+r, ACC+12+r
        k(f"v_add_f32 v{T}, v{A_}, v{B_}")
        k(f"v_sub_f32 v{T+1}, v{A_}, v{B_}")
        k(f"v_add_f32 v{T+2}, v{C_}, v{D_}")
        k(f"v_sub_f32 v{T+3}, v{C_}, v{D_}")
        k(f"v_fma_f32 v{T+4}, v8, v{T+2}, v{T}")
        k(f"v_mul_f32 v{T+5}, v8, v{T}")
        k(f"v_fmac_f32 v{T+5}, v9, v{T+2}")
        k(f"v_fma_f32 v{T+6}, -v8, v{T+3}, v{T+1}")
        k(f"v_fma_f32 v{T+7}, v8, v{T+1}, v{T+3}")
        k(f"ds_write_b32 v10, v{T+4} offset:{YOFF+r*HS}")
        k(f"ds_write_b32 v11, v{T+5} offset:{YOFF+r*HS}")
        k(f"ds_write_b32 v12, v{T+6} offset:{YOFF+r*HS}")
        k(f"ds_write_b32 v13, v{T+7} offset:{YOFF+r*HS}")
        if r == 2: k("s_waitcnt lgkmcnt(4)")
    k("s_cmp_ge_u32 s3, 4")
    k(f"s_cbranch_scc1 {Lnr}")
    k.srd(8, 6, 0, SZ_X)
    k.srd(12, 4, WS_MOD, SZ_MOD)
    k.srd(20, 4, WS_X1, SZ_X)
    k.srd(24, 4, WS_H2, SZ_X)
    k("v_lshrrev_b32 v1, 4, v0")
    k("v_and_b32 v2, 15, v0")
    k("s_and_b32 s30, s2, 3")
    k("s_lshl_b32 s30, s30, 9")
    k("s_lshr_b32 s31, s2, 2")
    k("s_add_u32 s30, s30, s31")
    k("s_mul_i32 s30, s30, 1152")
    k("v_mul_u32_u24 v3, 36864, v1")
    k("v_lshl_add_u32 v3, v2, 3, v3")
    k("v_lshlrev_b32 v4, 4, v2")
    XR, GA, SB, CB = 48, 66, 102, 12
    for i in range(9):
        k(f"buffer_load_dwordx2 {v(XR+2*i,2)}, v3, s[8:11], s30 offen offset:{128*i}")
    k(f"s_movk_i32 s32, {2*2304}")
    for i in range(9):
        k(f"buffer_load_dwordx4 {v(GA+4*i,4)}, v4, s[12:15], s32 offen offset:{256*i}")
    k(f"s_movk_i32 s32, {3*2304}")
    for i in range(9):
        k(f"buffer_load_dwordx4 {v(SB+4*i,4)}, v4, s[12:15], s32 offen offset:{256*i}")
    k.place(Lnr)
    k("s_waitcnt lgkmcnt(0)")
    k("s_barrier")
    k("s_cmp_ge_u32 s3, 4")
    k(f"s_cbranch_scc1 {Lend}")
    Y = 12
    k(f"v_mul_u32_u24 v8, {HS}, v1")
    k("v_lshl_add_u32 v9, v2, 4, v8")
    for i in range(9):
        k(f"ds_read_b128 {v(Y+4*i,4)}, v9 offset:{YOFF+256*i}")
    k(f"s_mov_b32 s33, {f2u(2.0/(576*2048)):#x}")
    k("s_waitcnt vmcnt(9) lgkmcnt(0)")
    for i in range(36):
        k(f"v_mul_f32 v{Y+i}, s33, v{Y+i}")
    for i in range(18):
        k(f"v_lshlrev_b32 v10, 16, v{XR+i}")
        k(f"v_and_b32 v11, 0xffff0000, v{XR+i}")
        k(f"v_fmac_f32 v10, v{GA+2*i}, v{Y+2*i}")
        k(f"v_fmac_f32 v11, v{GA+2*i+1}, v{Y+2*i+1}")
        k(f"v_cvt_pk_bf16_f32 v{XR+i}, v10, v11")
    k(f"s_movk_i32 s32, {4*2304}")
    for i in range(9):
        k(f"buffer_load_dwordx4 {v(CB+4*i,4)}, v4, s[12:15], s32 offen offset:{256*i}")
    for i in range(9):
        k(f"buffer_store_dwordx2 {v(XR+2*i,2)}, v3, s[20:23], s30 offen offset:{128*i}")
    X = GA
    for i in range(18):
        k(f"v_lshlrev_b32 v{X+2*i}, 16, v{XR+i}")
        k(f"v_and_b32 v{X+2*i+1}, 0xffff0000, v{XR+i}")
    ln_stats(k, X, 36, 6, 7, 8)
    for i in range(36):
        k(f"v_fma_f32 v{X+i}, v{X+i}, v7, v6")
    k("s_waitcnt vmcnt(9)")
    for i in range(36):
        k(f"v_fma_f32 v{X+i}, v{X+i}, v{CB+i}, v{SB+i}")
    HO = 140
    for i in range(18):
        k(f"v_cvt_pk_bf16_f32 v{HO+i}, v{X+2*i}, v{X+2*i+1}")
    k("v_lshrrev_b32 v8, 1, v2")
    k("v_lshlrev_b32 v8, 9, v8")
    k("v_lshl_add_u32 v8, v1, 4, v8")
    k("v_and_b32 v9, 1, v2")
    k("v_lshl_add_u32 v8, v9, 3, v8")
    k("s_lshr_b32 s34, s2, 1")
    k("s_mul_i32 s34, s34, 36864")
    k("s_and_b32 s35, s2, 1")
    k("s_lshl_b32 s35, s35, 8")
    k("s_add_u32 s34, s34, s35")
    for i in range(9):
        k(f"buffer_store_dwordx2 {v(HO+2*i,2)}, v8, s[24:27], s34 offen")
        if i < 8: k("s_add_u32 s34, s34, 4096")
    k.place(Lend)
    k("s_endpgm")
    return k

class VQ:
    def __init__(self): self.q = []
    def issue(self, tag): self.q.append(tag); assert len(self.q) <= 63, "vmcnt overflow"
    def wait_for(self, pred):
        last = -1
        for i, t in enumerate(self.q):
            if pred(t): last = i
        if last < 0: return None
        n = len(self.q) - 1 - last
        self.q = self.q[last+1:]
        return n

def k4():
    STG = 12544; RING = 12; UOFF = 6272
    k = Kern('k4_up_kernel', 256, 256, STG*RING, vgpr=256, agpr=256)
    Lend = k.label('end')
    k(f"s_load_dwordx2 s[4:5], s[0:1], {KA_WS}")
    k(f"s_load_dwordx4 s[8:11], s[0:1], {KA_WG}")
    k("v_lshrrev_b32 v1, 6, v0")
    k("v_readfirstlane_b32 s3, v1")
    k("s_cmp_ge_u32 s2, 256")
    k(f"s_cbranch_scc1 {Lend}")
    k("s_and_b32 s28, s2, 7")
    k("s_lshl_b32 s28, s28, 2")
    k("s_bfe_u32 s29, s2, 0x20003")
    k("s_add_u32 s28, s28, s29")
    k("s_lshr_b32 s29, s2, 5")
    VL, VD, VB, VC = 250, 251, 254, 255
    k(f"v_and_b32 v1, 63, v0")
    k(f"v_lshlrev_b32 v{VL}, 4, v1")
    for i in range(3):
        k(f"v_add_u32 v2, {64*i}, v1")
        k(f"v_mul_u32_u24 v3, 43691, v2")
        k(f"v_lshrrev_b32 v3, 18, v3")
        k(f"v_mul_u32_u24 v4, 6, v3")
        k(f"v_sub_u32 v4, v2, v4")
        k(f"v_mul_u32_u24 v3, 9216, v3")
        k(f"v_lshl_add_u32 v3, v4, 4, v3")
        k(f"v_subrev_u32 v{VD+i}, {1024*i}, v3")
    k("v_bfe_u32 v2, v0, 4, 1")
    k(f"v_mul_u32_u24 v2, {UOFF}, v2")
    k("v_bfe_u32 v3, v0, 5, 1")
    k("v_bfe_u32 v4, v0, 2, 2")
    k("v_lshl_add_u32 v3, v3, 3, v4")
    k("v_mul_u32_u24 v3, 96, v3")
    k("v_and_b32 v4, 3, v0")
    k("v_lshl_add_u32 v3, v4, 3, v3")
    k(f"v_add_u32 v{VB}, v2, v3")
    k("s_waitcnt lgkmcnt(0)")
    k("s_cmp_ge_u32 s3, 2")
    k("s_cselect_b32 s12, s10, s8")
    k("s_cselect_b32 s13, s11, s9")
    k(f"s_mov_b32 s14, {576*4608*2:#x}")
    k("s_mov_b32 s15, 0x20000")
    k(f"s_cselect_b32 s31, {UOFF}, 0")
    k("s_and_b32 s30, s3, 1")
    k("s_mul_i32 s32, s30, 3072")
    k("s_add_u32 s31, s31, s32")
    k(f"s_mul_i32 s32, s30, {32*9216}")
    k("s_mul_i32 s33, s28, 288")
    k("s_add_u32 s32, s32, s33")
    k.srd(16, 4, WS_H2, SZ_X)
    k.srd(20, 4, WS_P, SZ_P)
    k("s_lshl_b32 s34, s29, 3")
    k("s_lshl_b32 s35, s3, 1")
    k("s_add_u32 s34, s34, s35")
    k("s_mul_i32 s35, s34, 36864")
    k(f"s_mul_i32 s36, s34, {288*1024}")
    k(f"s_mul_i32 s37, s28, {9*1024}")
    k("s_add_u32 s36, s36, s37")
    q = VQ()
    def hreg(ks, nt):
        i = ks*2+nt
        return a(4*i, 4) if i < 64 else v(192 + 4*(i-64), 4)
    def dma(st):
        grp, sk = divmod(st, 9)
        k(f"s_add_u32 m0, s31, {(st % RING)*STG}")
        k(f"s_add_u32 s38, s32, {sk*64*9216 + grp*96}")
        for i in range(3):
            k(f"buffer_load_dwordx4 v{VD+i}, s[12:15], s38 offen offset:{1024*i} lds")
            q.issue(('w', st))
    def hload(st):
        for nt in range(2):
            k(f"s_add_u32 s39, s35, {nt*36864 + st*4096}")
            for kk in range(4):
                k(f"buffer_load_dwordx4 {hreg(4*st+kk, nt)}, v{VL}, s[16:19], s39 offen offset:{1024*kk}")
                q.issue(('h', st))
    AFR = 224
    def aread(st, kk, buf):
        out = []
        for i in range(3):
            for hh in range(2):
                out.append(f"ds_read_b64_tr_b16 {v(AFR+12*buf+4*i+2*hh,2)}, v{VC} offset:{(16*kk+4*hh)*96+32*i}")
        return out
    NST = 27
    nd = 0; nh = 0
    for st in range(5):
        dma(st); hload(st)
    nd = nh = 5
    def sync(st):
        n = q.wait_for(lambda t: t[0] in 'wh' and t[1] == st)
        if n is not None: k(f"s_waitcnt vmcnt({n})")
        k("s_barrier")
        k(f"v_add_u32 v{VC}, {(st % RING)*STG}, v{VB}")
    def epi(grp):
        out = []
        base = 96*(grp & 1)
        for i in range(3):
            for nt in range(2):
                c = base + 16*(2*i+nt)
                for r in range(8): out.append(f"v_mul_f32 v{c+r}, v{c+r}, v{c+8+r}")
                for r in range(4): out.append(f"v_cvt_pk_bf16_f32 v{c+r}, v{c+2*r}, v{c+2*r+1}")
                out.append(f"s_add_u32 s40, s36, {nt*288*1024 + (3*grp+i)*1024}")
                out.append(('st', f"buffer_store_dwordx4 {v(c,4)}, v{VL}, s[20:23], s40 offen"))
        return out
    sync(0)
    for x in aread(0, 0, 0): k(x)
    pend = []
    step = 0
    for st in range(NST):
        grp, sk = divmod(st, 9)
        base = 96*(grp & 1)
        for kk in range(4):
            ks = 4*sk+kk
            buf = step & 1
            last = (st == NST-1 and kk == 3)
            k("s_waitcnt lgkmcnt(0)")
            if kk == 3 and not last:
                sync(st+1)
                budget = 2 if nh >= 9 else 1
                while budget > 0 and nd < NST and nd <= st - 1 + RING and len(q.q) <= 63-3-(8 if nh < 9 else 0)-6:
                    dma(nd); nd += 1; budget -= 1
                if nh < 9:
                    hload(nh); nh += 1
            rd = [] if last else (aread(st+1, 0, buf ^ 1) if kk == 3 else aread(st, kk+1, buf ^ 1))
            if sk == 0 and kk == 1 and grp > 0: pend = epi(grp-1)
            for i in range(3):
                for nt in range(2):
                    c = base + 16*(2*i+nt)
                    k(f"v_mfma_f32_32x32x16_bf16 {v(c,16)}, {v(AFR+12*buf+4*i,4)}, {hreg(ks,nt)}, {'0' if ks == 0 else v(c,16)}")
                    if rd: k(rd.pop(0))
                    for _ in range(3):
                        if pend:
                            x = pend.pop(0)
                            if isinstance(x, tuple): k(x[1]); q.issue(('s', 0))
                            else: k(x)
            step += 1
    assert nd == NST and not pend
    for x in epi(2):
        k(x[1] if isinstance(x, tuple) else x)
    k.place(Lend)
    k("s_endpgm")
    return k

def k5():
    STG = 36864; RING = 4
    k = Kern('k5_down_kernel', 256, 256, STG*RING, vgpr=160, agpr=72)
    Lend = k.label('end')
    k(f"s_load_dwordx2 s[4:5], s[0:1], {KA_WS}")
    k(f"s_load_dwordx2 s[8:9], s[0:1], {KA_WD}")
    k("v_lshrrev_b32 v1, 6, v0")
    k("v_readfirstlane_b32 s3, v1")
    k("s_cmp_ge_u32 s2, 256")
    k(f"s_cbranch_scc1 {Lend}")
    k("s_and_b32 s28, s2, 3")
    k("s_bfe_u32 s29, s2, 0x10002")
    k("s_lshl_b32 s29, s29, 3")
    k("s_bfe_u32 s30, s2, 0x30003")
    k("s_add_u32 s29, s29, s30")
    k("s_lshr_b32 s30, s2, 6")
    VD, VP, VB, VC, VS = 140, 149, 150, 151, 152
    k("v_and_b32 v1, 63, v0")
    for i in range(9):
        k(f"v_add_u32 v2, {64*i}, v1")
        k(f"v_mul_u32_u24 v3, 58255, v2")
        k(f"v_lshrrev_b32 v3, 20, v3")
        k(f"v_mul_u32_u24 v4, 18, v3")
        k(f"v_sub_u32 v4, v2, v4")
        k(f"v_mul_u32_u24 v3, 1152, v3")
        k(f"v_lshl_add_u32 v3, v4, 4, v3")
        k(f"v_subrev_u32 v{VD+i}, {1024*(i%4)}, v3")
    k("v_and_b32 v2, 15, v0")
    k("v_bfe_u32 v3, v0, 4, 2")
    k("v_lshlrev_b32 v4, 9, v3")
    k(f"v_lshl_add_u32 v{VP}, v2, 4, v4")
    k("v_bfe_u32 v4, v0, 5, 1")
    k("v_lshlrev_b32 v4, 4, v4")
    k("v_bfe_u32 v5, v0, 2, 3")
    k("v_add_u32 v4, v4, v5")
    k("v_mul_u32_u24 v4, 288, v4")
    k("v_and_b32 v5, 3, v0")
    k(f"v_lshl_add_u32 v{VB}, v5, 3, v4")
    k(f"v_mul_u32_u24 v4, {32*2304}, v2")
    k(f"v_lshl_add_u32 v{VS}, v3, 4, v4")
    k("s_waitcnt lgkmcnt(0)")
    k.srd(12, 8, 0, 4608*576*2)
    k.srd(16, 4, WS_P, SZ_P)
    k.srd(20, 4, WS_PART, SZ_PART)
    k(f"s_mul_i32 s31, s3, 9216")
    k(f"s_mul_i32 s32, s28, {1152*1152}")
    k(f"s_mul_i32 s33, s3, {32*1152}")
    k("s_add_u32 s32, s32, s33")
    k("s_mul_i32 s33, s30, 288")
    k("s_add_u32 s32, s32, s33")
    k("s_lshl_b32 s34, s29, 2")
    k("s_add_u32 s34, s34, s3")
    k(f"s_mul_i32 s35, s34, {288*1024}")
    k(f"s_mul_i32 s36, s28, {72*1024}")
    k("s_add_u32 s35, s35, s36")
    q = VQ()
    PD = 12
    def preg(ks, nt): return 8*(ks % PD) + 4*nt + 0
    PB = 8
    def dma(st):
        k(f"s_add_u32 s38, s32, {st*128*1152}")
        for i in range(9):
            if i % 4 == 0: k(f"s_add_u32 m0, s31, {(st % RING)*STG + 1024*i}")
            k(f"buffer_load_dwordx4 v{VD+i}, s[12:15], s38 offen offset:{1024*(i%4)} lds")
            q.issue(('w', st))
    def pload(ks):
        k(f"s_add_u32 s39, s35, {ks*2048}")
        for nt in range(2):
            k(f"buffer_load_dwordx4 {v(PB+preg(ks,nt),4)}, v{VP}, s[16:19], s39 offen offset:{256*nt}")
            q.issue(('p', ks))
    AFR = 104; NB = 6; LA = 4
    frs = [(ks, dt) for ks in range(36) for dt in range(9)]
    def aread(fi):
        ks, dt = frs[fi]
        kk = ks % 4
        for hh in range(2):
            k(f"ds_read_b64_tr_b16 {v(AFR+4*(fi % NB)+2*hh,2)}, v{VC} offset:{(32*kk+8*hh)*288+32*dt}")
    dma(0)
    for ks in range(4): pload(ks)
    dma(1)
    for ks in range(4, 8): pload(ks)
    dma(2)
    for ks in range(8, PD-1): pload(ks)
    nd = 3; npl = PD-1
    def sync(st):
        n = q.wait_for(lambda t: t[0] == 'w' and t[1] == st)
        if n is not None: k(f"s_waitcnt vmcnt({n})")
        k("s_barrier")
        k(f"v_add_u32 v{VC}, {(st % RING)*STG}, v{VB}")
    sync(0)
    for fi in range(LA): aread(fi)
    for fi, (ks, dt) in enumerate(frs):
        nx = fi + LA
        if nx < len(frs):
            if frs[nx][1] == 0 and frs[nx][0] % 4 == 0:
                st = frs[nx][0] // 4
                sync(st)
                if nd < 9 and nd <= st - 2 + RING:
                    dma(nd); nd += 1
            aread(nx)
        if dt == 0:
            n = q.wait_for(lambda t: t[0] == 'p' and t[1] == ks)
            if n is not None: k(f"s_waitcnt vmcnt({n})")
        rem = min(LA, len(frs)-1-fi)
        k(f"s_waitcnt lgkmcnt({2*rem})")
        for nt in range(2):
            c = 8*dt + 4*nt
            k(f"v_mfma_f32_16x16x32_bf16 {a(c,4)}, {v(AFR+4*(fi % NB),4)}, {v(PB+preg(ks,nt),4)}, {'0' if ks == 0 else a(c,4)}")
        if dt == 1 and npl < 36:
            pload(npl); npl += 1
    assert nd == 9 and npl == 36
    k("s_lshr_b32 s36, s34, 1")
    k("s_and_b32 s37, s3, 1")
    k("s_lshl_b32 s37, s37, 10")
    k("s_add_u32 s36, s36, s37")
    k("s_lshl_b32 s37, s28, 11")
    k("s_add_u32 s36, s36, s37")
    k("s_mul_i32 s36, s36, 2304")
    k("s_mul_i32 s37, s30, 576")
    k("s_add_u32 s36, s36, s37")
    k(f"s_add_u32 s37, s36, {512*2304}")
    for dt in range(9):
        for nt in range(2):
            k(f"buffer_store_dwordx4 {a(8*dt+4*nt,4)}, v{VS}, s[20:23], s{36+nt} offen offset:{64*dt}")
    k.place(Lend)
    k("s_endpgm")
    return k

def k6():
    k = Kern('k6_fin_kernel', 576, 256, 0, vgpr=64)
    Lend = k.label('end')
    k(f"s_load_dwordx2 s[4:5], s[0:1], {KA_WS}")
    k(f"s_load_dwordx2 s[6:7], s[0:1], {KA_OUT}")
    k("s_cmp_ge_u32 s2, 576")
    k(f"s_cbranch_scc1 {Lend}")
    k("s_lshl_b32 s3, s2, 8")
    k("v_add_u32 v1, s3, v0")
    k(f"s_mov_b32 s28, {-(-(1<<32)//72)}")
    k("v_mul_hi_u32 v2, v1, s28")
    k("v_mul_u32_u24 v2, 72, v2")
    k("v_sub_u32 v2, v1, v2")
    k("v_lshlrev_b32 v2, 5, v2")
    k("v_lshlrev_b32 v3, 5, v1")
    k("v_lshlrev_b32 v1, 4, v1")
    k("s_waitcnt lgkmcnt(0)")
    k.srd(8, 4, WS_PART, SZ_PART)
    k.srd(12, 4, WS_MOD, SZ_MOD)
    k.srd(16, 4, WS_X1, SZ_X)
    k.srd(20, 6, 0, SZ_X)
    for sp in range(4):
        k(f"s_mov_b32 s29, {sp*2048*2304}")
        k(f"buffer_load_dwordx4 {v(8+8*sp,4)}, v3, s[8:11], s29 offen")
        k(f"buffer_load_dwordx4 {v(12+8*sp,4)}, v3, s[8:11], s29 offen offset:16")
    k(f"s_movk_i32 s29, {5*2304}")
    k("buffer_load_dwordx4 v[40:43], v2, s[12:15], s29 offen")
    k("buffer_load_dwordx4 v[44:47], v2, s[12:15], s29 offen offset:16")
    k("buffer_load_dwordx4 v[48:51], v1, s[16:19], 0 offen")
    k("s_waitcnt vmcnt(0)")
    for i in range(8):
        k(f"v_add_f32 v{8+i}, v{8+i}, v{16+i}")
        k(f"v_add_f32 v{24+i}, v{24+i}, v{32+i}")
        k(f"v_add_f32 v{8+i}, v{8+i}, v{24+i}")
    for i in range(4):
        k(f"v_lshlrev_b32 v52, 16, v{48+i}")
        k(f"v_and_b32 v53, 0xffff0000, v{48+i}")
        k(f"v_fmac_f32 v52, v{8+2*i}, v{40+2*i}")
        k(f"v_fmac_f32 v53, v{8+2*i+1}, v{40+2*i+1}")
        k(f"v_cvt_pk_bf16_f32 v{48+i}, v52, v53")
    k("buffer_store_dwordx4 v[48:51], v1, s[20:23], 0 offen")
    k.place(Lend)
    k("s_endpgm")
    return k

if __name__ == '__main__':
    ref = open(f'cdna_kernels/{NAME}.s.ref').read().split('\n')
    hdr = '\n'.join(l for l in ref[:13])
    ks = [k0(), k1(), k2(), k3(), k4(), k5(), k6()]
    txt = build(ks, hdr)
    out = sys.argv[1] if len(sys.argv) > 1 else f'cdna_kernels/{NAME}.s'
    open(out, 'w').write(txt)
    for x in ks: print(x.name, len(x.L), 'lines', x.nops, 'nops')
```

```python
import sys, struct
from asmlib import *

NAME = 'adaLN_cond__spectral_gfnet__glu_gated_bilinear__prompt'
KA_X, KA_WR, KA_WI, KA_BX, KA_WG, KA_WU, KA_WD, KA_C, KA_WM, KA_OUT, KA_DBG, KA_WS = [8*i for i in range(12)]
WS_MOD = 0;            SZ_MOD = 3456*4
WS_TAB = 0x10000;      SZ_TAB = 648*1024
WS_WT  = 0x100000;     SZ_WT = 289*8192
WS_T1  = 0x400000;     SZ_T = 288*8192
WS_T2  = 0x700000
WS_X1  = 0xA00000;     SZ_X = 2048*576*2
WS_H2  = 0xD00000
WS_P   = 0x1000000;    SZ_P = 2048*4608*2
WS_PART= 0x2400000;    SZ_PART = 4*2048*576*2

WS_DBG = 0x4000000
import os
STAMP = os.environ.get('STAMP', '')
class Stamps:
    def __init__(self, k, name, base=44, maxn=28):
        self.k = k; self.on = (STAMP == name); self.n = 0; self.base = base; self.maxn = maxn
        if self.on: k.sgpr = 102
    def __call__(self):
        if self.on and self.n < self.maxn:
            self.k(f"s_memtime s[{self.base+2*self.n}:{self.base+2*self.n+1}]"); self.n += 1
    def real(self):
        if self.on and self.n < self.maxn:
            self.k(f"s_memrealtime s[{self.base+2*self.n}:{self.base+2*self.n+1}]"); self.n += 1
    def flush(self, wsreg=4, wid=3, tv=0):
        if not self.on: return
        k = self.k
        k("s_waitcnt vmcnt(0) lgkmcnt(0)")
        self(); self.real()
        k("s_waitcnt lgkmcnt(0)")
        k.srd(8, wsreg, WS_DBG, 1 << 22)
        k("s_lshl_b32 s12, s2, 4")
        k(f"s_add_u32 s12, s12, s{wid}")
        k("s_lshl_b32 s12, s12, 7")
        k(f"v_mov_b32 v{tv+1}, 0")
        for i in range(self.n):
            k(f"v_mov_b32 v{tv}, s{self.base+2*i}")
            k(f"buffer_store_dword v{tv}, v{tv+1}, s[8:11], s12 offen offset:{4*i}")

E = os.environ.get
K4MAP = int(E('K4MAP', 1)); K4PRE = int(E('K4PRE', 3)); K4HLA = int(E('K4HLA', 7))
K4SYNC = eval(E('K4SYNC', '[0,1,2,3,4,6,8,10,12,14,16,18,21,24]'))
K5PRE = int(E('K5PRE', 4)); K5SYNC = eval(E('K5SYNC', '[0,1,2,3,4,6,8,10,12,14,16,18,20,22,24,26,28,30,32,34]'))
K5SLOTS = eval(E('K5SLOTS', '(0,1,2,4,5,6,7)'))
PST = E('PST', '')
def f2u(x): return struct.unpack('<I', struct.pack('<f', x))[0]

def dpp_allreduce16(k, r, t):
    for sh in (8, 4, 2, 1):
        k(f"v_add_f32_dpp {v(r)}, {v(r)}, {v(r)} row_ror:{sh} row_mask:0xf bank_mask:0xf")

def rnd_bf16(k, r):
    k(f"v_cvt_pk_bf16_f32 {v(r)}, {v(r)}, {v(r)}")
    k(f"v_lshlrev_b32 {v(r)}, 16, {v(r)}")

def k0():
    NMOD, NWT, NTAB = 108, 160, 162
    k = Kern('k0_prep_kernel', NMOD+NWT+NTAB, 256, 2048, vgpr=72)
    Lwt, Ltab, Lend = k.label('wt'), k.label('tab'), k.label('end')
    k(f"s_load_dwordx2 s[4:5], s[0:1], {KA_WS}")
    k(f"s_load_dwordx4 s[8:11], s[0:1], {KA_WR}")
    k(f"s_load_dwordx4 s[12:15], s[0:1], {KA_C}")
    k(f"v_lshrrev_b32 v1, 6, v0")
    k(f"v_readfirstlane_b32 s3, v1")
    k(f"s_cmp_ge_u32 s2, {NMOD+NWT+NTAB}")
    k(f"s_cbranch_scc1 {Lend}")
    k(f"s_waitcnt lgkmcnt(0)")
    k(f"s_cmp_ge_u32 s2, {NMOD+NWT}")
    k(f"s_cbranch_scc1 {Ltab}")
    k(f"s_cmp_ge_u32 s2, {NMOD}")
    k(f"s_cbranch_scc1 {Lwt}")
    k.srd(16, 14, 0, 576*3456*2)
    k.srd(20, 12, 0, 1152)
    k.srd(24, 4, WS_MOD, SZ_MOD)
    k("v_and_b32 v1, 3, v0")
    k("v_lshrrev_b32 v2, 2, v0")
    k("v_mul_u32_u24 v3, 6912, v2")
    k("v_lshl_add_u32 v3, v1, 4, v3")
    k("v_lshlrev_b32 v4, 1, v2")
    k("s_lshl_b32 s28, s2, 6")
    for i in range(9):
        k(f"buffer_load_ushort v{48+i}, v4, s[20:23], 0 offen offset:{128*i}")
    for i in range(9):
        k(f"buffer_load_dwordx4 {v(8+4*i,4)}, v3, s[16:19], s28 offen")
        if i < 8: k(f"s_add_u32 s28, s28, {64*6912}")
    k("s_waitcnt vmcnt(9)")
    for i in range(9):
        r = 48+i
        k(f"v_lshlrev_b32 v{r}, 16, v{r}")
        k(f"v_mul_f32 v5, {f2u(-1.4426950408889634):#x}, v{r}")
        k(f"v_exp_f32 v5, v5")
        k(f"v_add_f32 v5, 1.0, v5")
        k(f"v_rcp_f32 v5, v5")
        k(f"v_mul_f32 v{r}, v{r}, v5")
        rnd_bf16(k, r)
    for j in range(8): k(f"v_mov_b32 v{60+j}, 0")
    for i in range(9):
        k(f"s_waitcnt vmcnt({8-i})")
        for j in range(4):
            k(f"v_lshlrev_b32 v5, 16, v{8+4*i+j}")
            k(f"v_and_b32 v6, 0xffff0000, v{8+4*i+j}")
            k(f"v_fmac_f32 v{60+2*j}, v5, v{48+i}")
            k(f"v_fmac_f32 v{60+2*j+1}, v6, v{48+i}")
    for sh in (4, 8):
        for j in range(8):
            k(f"v_add_f32_dpp v{60+j}, v{60+j}, v{60+j} row_ror:{sh} row_mask:0xf bank_mask:0xf")
    k("v_lshrrev_b32 v5, 4, v0")
    k("v_lshlrev_b32 v5, 7, v5")
    k("v_lshl_add_u32 v5, v1, 5, v5")
    k("ds_write_b128 v5, v[60:63]")
    k("ds_write_b128 v5, v[64:67] offset:16")
    k("s_waitcnt lgkmcnt(0)")
    k("s_barrier")
    k("s_cmp_lg_u32 s3, 0")
    k(f"s_cbranch_scc1 {Lend}")
    k("v_and_b32 v5, 31, v0")
    k("v_lshlrev_b32 v5, 2, v5")
    for i in range(8):
        k(f"ds_read2_b32 {v(8+2*i,2)}, v5 offset0:{64*i} offset1:{64*i+32}" if 64*i+32 < 256 else f"ds_read2_b32 {v(8+2*i,2)}, v6 offset0:{64*i-256} offset1:{64*i+32-256}")
        if i == 0: k("v_add_u32 v6, 1024, v5")
    k("s_waitcnt lgkmcnt(0)")
    for st in (8, 4, 2, 1):
        for i in range(st): k(f"v_add_f32 v{8+i}, v{8+i}, v{8+i+st}")
    rnd_bf16(k, 8)
    k("s_mul_i32 s29, s2, 3641")
    k("s_lshr_b32 s29, s29, 16")
    k("s_cmp_eq_u32 s29, 1")
    k("s_cselect_b32 s30, 1.0, 0")
    k("s_cmp_eq_u32 s29, 4")
    k("s_cselect_b32 s30, 1.0, s30")
    k("v_add_f32 v8, s30, v8")
    rnd_bf16(k, 8)
    k("s_lshl_b32 s28, s2, 7")
    k("buffer_store_dword v8, v5, s[24:27], s28 offen")
    k("s_endpgm")
    k.place(Lwt)
    k(f"s_sub_u32 s28, s2, {NMOD}")
    k("s_and_b32 s29, s28, 3")
    k("s_lshr_b32 s30, s28, 2")
    k("s_and_b32 s30, s30, 7")
    k("s_lshr_b32 s31, s28, 5")
    k.srd(16, 8, 0, 2048*578)
    k.srd(20, 10, 0, 2048*578)
    k.srd(24, 4, WS_WT, SZ_WT)
    k("v_and_b32 v1, 63, v0")
    k("s_lshl_b32 s32, s31, 6")
    k("v_add_u32 v1, s32, v1")
    k("v_lshlrev_b32 v2, 1, v1")
    k("s_lshl_b32 s33, s29, 4")
    k("s_lshl_b32 s34, s3, 2")
    k("s_add_u32 s33, s33, s34")
    k("s_lshl_b32 s34, s30, 8")
    k("s_add_u32 s33, s33, s34")
    k("s_mul_i32 s33, s33, 578")
    for r in range(4):
        for kk in range(4):
            k(f"buffer_load_ushort v{8+kk*4+r}, v2, s[16:19], s33 offen offset:{578*kk}")
            k(f"buffer_load_ushort v{24+kk*4+r}, v2, s[20:23], s33 offen offset:{578*kk}")
        if r < 3: k(f"s_add_u32 s33, s33, {64*578}")
    k("v_lshlrev_b32 v3, 13, v1")
    k("s_lshl_b32 s34, s29, 11")
    k("s_lshl_b32 s35, s30, 8")
    k("s_add_u32 s34, s34, s35")
    k("s_lshl_b32 s35, s3, 6")
    k("s_add_u32 s34, s34, s35")
    k("s_waitcnt vmcnt(0)")
    for i in range(16):
        k(f"v_lshl_or_b32 v{8+i}, v{24+i}, 16, v{8+i}")
    for kk in range(4):
        k(f"buffer_store_dwordx4 {v(8+4*kk,4)}, v3, s[24:27], s34 offen offset:{16*kk}")
    k("s_endpgm")
    k.place(Ltab)
    k(f"s_sub_u32 s28, s2, {NMOD+NWT}")
    k("s_mul_i32 s29, s28, 7282")
    k("s_lshr_b32 s29, s29, 16")
    k("s_mul_i32 s30, s29, 9")
    k("s_sub_u32 s30, s28, s30")
    Lc1 = k.label('c')
    k("s_cmp_lt_u32 s29, 9")
    k("s_cselect_b32 s31, 1, 0")
    k("s_cmp_gt_u32 s30, 4")
    k("s_cselect_b32 s32, 1, 0")
    k("s_and_b32 s31, s31, s32")
    k(f"s_cbranch_scc1 {Lend}")
    k("s_cmp_gt_u32 s29, 9")
    k("s_cselect_b32 s31, 1, 0")
    k("s_cmp_lt_u32 s30, 4")
    k("s_cselect_b32 s32, 1, 0")
    k("s_and_b32 s31, s31, s32")
    k(f"s_cbranch_scc1 {Lend}")
    k.srd(24, 4, WS_TAB, SZ_TAB)
    k("s_and_b32 s33, s3, 1")
    k("s_lshr_b32 s34, s3, 1")
    k("s_sub_u32 s35, 145, s33")
    k("v_and_b32 v1, 15, v0")
    k("s_lshl_b32 s36, s29, 4")
    k("v_add_u32 v1, s36, v1")
    k("v_bfe_u32 v2, v0, 4, 2")
    k("v_lshlrev_b32 v2, 3, v2")
    k("s_lshl_b32 s36, s30, 5")
    k("v_add_u32 v2, s36, v2")
    k("s_cmp_eq_u32 s34, 0")
    k("s_cselect_b64 s[40:41], -1, 0")
    k("s_cselect_b32 s37, 1.0, 0.5")
    k("s_movk_i32 s38, 144")
    k("s_movk_i32 s39, 288")
    for j in range(8):
        k(f"v_add_u32 v3, {j}, v2")
        k(f"v_cndmask_b32 v4, v3, v1, s[40:41]")
        k(f"v_cndmask_b32 v5, v1, v3, s[40:41]")
        k(f"v_cmp_le_u32 s[42:43], s35, v4")
        k(f"v_cmp_le_u32 s[44:45], s35, v5")
        k(f"v_subrev_u32 v6, s38, v4")
        k(f"v_cndmask_b32 v6, v4, v6, s[42:43]")
        k(f"v_lshl_add_u32 v6, v6, 1, s33")
        k(f"v_subrev_u32 v7, s38, v5")
        k(f"v_cmp_lt_u32 vcc, s38, v5")
        k(f"v_cndmask_b32 v7, v5, v7, vcc")
        k(f"v_mul_u32_u24 v20, v6, v7")
        k(f"v_cvt_f32_u32 v20, v20")
        k(f"v_mov_b32 v21, 0")
        k(f"v_mov_b32 v22, 0.25" if False else f"v_mov_b32 v22, {f2u(0.25):#x}")
        k(f"v_cndmask_b32 v21, v21, v22, s[42:43]")
        k(f"v_fmamk_f32 v20, v20, {f2u(1.0/576):#x}, v21")
        k(f"v_fract_f32 v20, v20")
        k(f"v_cos_f32 v20, v20")
        k(f"v_cmp_eq_u32 vcc, 0, v6")
        k(f"v_cmp_eq_u32 s[46:47], s39, v6")
        k(f"s_or_b64 vcc, vcc, s[46:47]")
        k(f"v_mul_f32 v21, s37, v20")
        k(f"v_cndmask_b32 v20, v20, v21, vcc")
        k(f"s_xor_b64 s[42:43], s[42:43], s[44:45]")
        k(f"v_cndmask_b32 v{8+j}, v20, 0, s[42:43]")
    for j in range(4):
        k(f"v_cvt_pk_bf16_f32 v{8+j}, v{8+2*j}, v{8+2*j+1}")
    k("s_mul_i32 s36, s3, 162")
    k("s_add_u32 s36, s36, s28")
    k("s_lshl_b32 s36, s36, 10")
    k("v_and_b32 v1, 63, v0")
    k("v_lshlrev_b32 v1, 4, v1")
    k("buffer_store_dwordx4 v[8:11], v1, s[24:27], s36 offen")
    k.place(Lend)
    k("s_endpgm")
    return k

def tab_off(tab, par, nt, ks): return (((tab*2+par)*18 + nt)*9 + ks)*1024

def ln_stats(k, X, n, mean, rstd, t):
    k(f"v_add_f32 v{mean}, v{X}, v{X+1}")
    k(f"v_add_f32 v{t}, v{X+2}, v{X+3}")
    for i in range(4, n, 2):
        k(f"v_add_f32 v{mean}, v{mean}, v{X+i}")
        k(f"v_add_f32 v{t}, v{t}, v{X+i+1}")
    k(f"v_add_f32 v{mean}, v{mean}, v{t}")
    dpp_allreduce16(k, mean, t)
    k(f"v_mul_f32 v{mean}, {f2u(1.0/576):#x}, v{mean}")
    for i in range(n):
        k(f"v_sub_f32 v{X+i}, v{X+i}, v{mean}")
    k(f"v_mul_f32 v{rstd}, v{X}, v{X}")
    k(f"v_mul_f32 v{t}, v{X+1}, v{X+1}")
    for i in range(2, n, 2):
        k(f"v_fmac_f32 v{rstd}, v{X+i}, v{X+i}")
        k(f"v_fmac_f32 v{t}, v{X+i+1}, v{X+i+1}")
    k(f"v_add_f32 v{rstd}, v{rstd}, v{t}")
    dpp_allreduce16(k, rstd, t)
    k(f"v_mul_f32 v{rstd}, {f2u(1.0/576):#x}, v{rstd}")
    rnd_bf16(k, rstd)
    k(f"v_add_f32 v{rstd}, {f2u(1e-5):#x}, v{rstd}")
    rnd_bf16(k, rstd)
    k(f"v_sqrt_f32 v{rstd}, v{rstd}")
    rnd_bf16(k, rstd)
    k(f"v_rcp_f32 v{rstd}, v{rstd}")
    k(f"v_mov_b32 v{t}, v{mean}")
    rnd_bf16(k, t)
    k(f"v_sub_f32 v{mean}, v{mean}, v{t}")
    k(f"v_mul_f32 v{mean}, v{mean}, v{rstd}")

def k1():
    HS = 2320
    AS = 592
    AOFF = 16*HS
    k = Kern('k1_rdft_kernel', 256, 256, AOFF + 16*AS, vgpr=256)
    Lend = k.label('end')
    T_ = Stamps(k, 'k1'); T_.real(); T_()
    k(f"s_load_dwordx2 s[4:5], s[0:1], {KA_WS}")
    k(f"s_load_dwordx2 s[6:7], s[0:1], {KA_X}")
    k("v_lshrrev_b32 v1, 6, v0")
    k("v_readfirstlane_b32 s3, v1")
    k("s_cmp_ge_u32 s2, 256")
    k(f"s_cbranch_scc1 {Lend}")
    k("s_lshr_b32 s28, s2, 7")
    k("s_and_b32 s29, s2, 127")
    k("v_lshrrev_b32 v1, 4, v0")
    k("v_and_b32 v2, 15, v0")
    k("s_and_b32 s30, s29, 3")
    k("s_lshl_b32 s30, s30, 9")
    k("s_lshr_b32 s31, s29, 2")
    k("s_add_u32 s30, s30, s31")
    k("s_mul_i32 s30, s30, 1152")
    k("v_mul_u32_u24 v3, 36864, v1")
    k("v_lshl_add_u32 v3, v2, 3, v3")
    k("v_lshlrev_b32 v4, 4, v2")
    k("v_and_b32 v5, 63, v0")
    k("v_lshlrev_b32 v5, 4, v5")
    k("s_waitcnt lgkmcnt(0)")
    T_()
    k.srd(8, 6, 0, SZ_X)
    k.srd(12, 4, WS_MOD, SZ_MOD)
    k.srd(16, 4, WS_TAB, SZ_TAB)
    k.srd(20, 4, WS_T1, SZ_T)
    XR, SA, CA, B0, B2 = 8, 26, 62, 100, 180
    for i in range(9):
        k(f"buffer_load_dwordx2 {v(XR+2*i,2)}, v3, s[8:11], s30 offen offset:{128*i}")
    for i in range(9):
        k(f"buffer_load_dwordx4 {v(SA+4*i,4)}, v4, s[12:15], 0 offen offset:{256*i}")
    k("s_movk_i32 s32, 2304")
    for i in range(9):
        k(f"buffer_load_dwordx4 {v(CA+4*i,4)}, v4, s[12:15], s32 offen offset:{256*i}")
    k(f"s_mul_i32 s33, s28, {18*9*1024}")
    k(f"s_mul_i32 s34, s3, {9*1024}")
    k("s_add_u32 s34, s34, s33")
    def load5(dst, sreg):
        for i in range(5):
            if i == 4:
                k(f"s_add_u32 s{sreg}, s{sreg}, 4096")
                k(f"buffer_load_dwordx4 {v(dst+4*i,4)}, v5, s[16:19], s{sreg} offen")
            else:
                k(f"buffer_load_dwordx4 {v(dst+4*i,4)}, v5, s[16:19], s{sreg} offen offset:{1024*i}")
    for sl, tl in enumerate((1, 5)):
        k(f"s_add_u32 s35, s34, {tab_off(0,0,tl,0)}")
        load5(B0 + 40*sl, 35)
        k(f"s_add_u32 s35, s34, {tab_off(0,0,9+tl,4)}")
        load5(B0 + 40*sl + 20, 35)
    X = 220
    T_()
    k("s_waitcnt vmcnt(38)")
    T_()
    for i in range(18):
        k(f"v_lshlrev_b32 v{X+2*i}, 16, v{XR+i}")
        k(f"v_and_b32 v{X+2*i+1}, 0xffff0000, v{XR+i}")
    ln_stats(k, X, 36, 6, 7, 8)
    T_()
    k("s_waitcnt vmcnt(20)")
    T_()
    for i in range(36):
        k(f"v_fma_f32 v{X+i}, v{X+i}, v7, v6")
    for i in range(36):
        k(f"v_fma_f32 v{SA+i}, v{X+i}, v{CA+i}, v{SA+i}")
    Lx = k.label('x')
    k("s_cmp_lg_u32 s3, 0")
    k(f"s_cbranch_scc1 {Lx}")
    k(f"s_add_u32 s35, s33, {tab_off(0,0,0,0)}")
    load5(B2, 35)
    k(f"s_add_u32 s35, s33, {tab_off(0,0,9,0)}")
    for i in range(4):
        k(f"buffer_load_dwordx4 {v(B2+20+4*i,4)}, v5, s[16:19], s35 offen offset:{1024*i}")
    k(f"s_add_u32 s35, s35, 4096")
    load5(B2+36, 35)
    k.place(Lx)
    k(f"v_mul_u32_u24 v8, {HS}, v1")
    k("v_lshl_add_u32 v9, v2, 4, v8")
    for i in range(9):
        k(f"ds_write_b128 v9, {v(SA+4*i,4)} offset:{256*i}")
    k("v_lshl_add_u32 v10, v2, 2, v8")
    k("v_add_u32 v11, 1152, v10")
    k("v_lshlrev_b32 v12, 2, v2")
    k("v_sub_u32 v12, v8, v12")
    k(f"v_add_u32 v13, {1152-512}, v12")
    k(f"v_add_u32 v12, {2304-512}, v12")
    k("v_cmp_eq_u32 vcc, 0, v2")
    k(f"v_add_u32 v14, 512, v12")
    k(f"v_add_u32 v15, {144*4}, v8")
    k("v_cndmask_b32 v14, v14, v15, vcc")
    k(f"v_add_u32 v15, {432*4}, v8")
    k("v_cndmask_b32 v15, v11, v15, vcc")
    A_, B_, C_, E_ = CA, CA+9, CA+18, CA+27
    A_, B_, C_, E_ = 62, 72, 82, 16
    k("s_waitcnt lgkmcnt(0)")
    k(f"ds_read_b32 v{A_+8}, v10")
    k(f"ds_read_b32 v{B_+8}, v14")
    k(f"ds_read_b32 v{C_+8}, v13 offset:512")
    k(f"ds_read_b32 v{E_+8}, v15")
    def idx(base, i): return base+8 if i == 0 else base+i-1
    for p in range(4):
        i = 1+2*p
        k(f"ds_read2_b32 {v(A_+2*p,2)}, v10 offset0:{16*i} offset1:{16*(i+1)}")
        k(f"ds_read2_b32 {v(B_+2*p,2)}, v12 offset0:{128-16*i} offset1:{128-16*(i+1)}")
        k(f"ds_read2_b32 {v(C_+2*p,2)}, v13 offset0:{128-16*i} offset1:{128-16*(i+1)}")
        k(f"ds_read2_b32 {v(E_+2*p,2)}, v11 offset0:{16*i} offset1:{16*(i+1)}")
        if p == 1: k("s_waitcnt lgkmcnt(4)")
    k("s_cmp_eq_u32 s28, 0")
    k("s_cselect_b32 s36, 1.0, -1.0")
    k(f"v_mul_u32_u24 v9, {AS}, v1")
    k("v_lshl_add_u32 v9, v2, 1, v9")
    k("s_waitcnt lgkmcnt(0)")
    for i in range(9):
        a_, b_, c_, e_ = idx(A_, i), idx(B_, i), idx(C_, i), idx(E_, i)
        T = 26 + 4*(i % 4)
        k(f"v_fma_f32 v{T}, s36, v{c_}, v{a_}")
        k(f"v_fma_f32 v{T+1}, s36, v{e_}, v{b_}")
        k(f"v_fma_f32 v{T+2}, -s36, v{c_}, v{a_}")
        k(f"v_fma_f32 v{T+3}, -s36, v{e_}, v{b_}")
        k(f"v_sub_f32 v{T+2}, v{T+2}, v{T+3}")
        k(f"v_add_f32 v{T+3}, v{T}, v{T+1}")
        if i == 0:
            k(f"v_cndmask_b32 v{T+3}, v{T+3}, v{T}, vcc")
            k(f"v_cndmask_b32 v{T+2}, v{T+2}, v{T+1}, vcc")
        k(f"v_cvt_pk_bf16_f32 v{44+i}, v{T+3}, v{T+2}")
        k(f"ds_write_b16 v9, v{44+i} offset:{AOFF+32*i}")
        k(f"ds_write_b16_d16_hi v9, v{44+i} offset:{AOFF+288+32*i}")
    k(f"v_mul_u32_u24 v9, {AS}, v2")
    k("v_bfe_u32 v10, v0, 4, 2")
    k("v_lshl_add_u32 v9, v10, 4, v9")
    k("s_waitcnt lgkmcnt(0)")
    T_()
    k("s_barrier")
    T_()
    AF = 60
    for ks in range(9):
        k(f"ds_read_b128 {v(AF+4*ks,4)}, v9 offset:{AOFF+64*ks}")
    k("v_lshlrev_b32 v11, 13, v2")
    k("v_lshl_add_u32 v11, v10, 4, v11")
    k(f"s_mul_i32 s37, s28, {144*8192}")
    k("s_lshl_b32 s38, s29, 6")
    k("s_add_u32 s37, s37, s38")
    k("s_lshl_b32 s38, s3, 17")
    k("s_add_u32 s38, s38, s37")
    k("s_waitcnt vmcnt(0) lgkmcnt(0)")
    T_()
    def tile(B, acc, imks):
        for i in range(5):
            k(f"v_mfma_f32_16x16x32_bf16 {v(acc,4)}, {v(AF+4*i,4)}, {v(B+4*i,4)}, {'0' if i == 0 else v(acc,4)}")
        for i, ks in enumerate(imks):
            k(f"v_mfma_f32_16x16x32_bf16 {v(acc+4,4)}, {v(AF+4*ks,4)}, {v(B+20+4*i,4)}, {'0' if i == 0 else v(acc+4,4)}")
    def fin(acc, sreg):
        for i in range(4):
            k(f"v_cvt_pk_bf16_f32 v{acc+i}, v{acc+2*i}, v{acc+2*i+1}")
        k(f"buffer_store_dwordx4 {v(acc,4)}, v11, s[20:23], s{sreg} offen")
    tile(B0, 16, range(4, 9))
    tile(B0+40, 24, range(4, 9))
    k(f"s_add_u32 s39, s38, {1*16*8192}")
    k(f"s_add_u32 s40, s38, {5*16*8192}")
    fin(16, 39); fin(24, 40)
    T_(); T_.flush(tv=1)
    if T_.on: k('s_endpgm')
    k("s_cmp_lg_u32 s3, 0")
    k(f"s_cbranch_scc1 {Lend}")
    tile(B2, 32, range(0, 9))
    fin(32, 37)
    k.place(Lend)
    k("s_endpgm")
    return k

def k2():
    k = Kern('k2_sfft_kernel', 289, 256, 8192, vgpr=168)
    Lend = k.label('end')
    T = Stamps(k, 'k2'); T.real(); T()
    k(f"s_load_dwordx2 s[4:5], s[0:1], {KA_WS}")
    k("v_lshrrev_b32 v1, 6, v0")
    k("v_readfirstlane_b32 s3, v1")
    k("s_cmp_ge_u32 s2, 289")
    k(f"s_cbranch_scc1 {Lend}")
    k("s_cmp_eq_u32 s2, 288")
    k("s_cselect_b32 s28, 0, s2")
    k("s_lshl_b32 s28, s28, 13")
    k("s_lshl_b32 s29, s2, 1")
    k("s_sub_u32 s30, s29, 287")
    k("s_cmp_lt_u32 s2, 144")
    k("s_cselect_b32 s29, s29, s30")
    k("s_min_u32 s29, s29, 288")
    k("s_lshl_b32 s29, s29, 13")
    k("s_lshl_b32 s30, s3, 11")
    k("s_add_u32 s29, s29, s30")
    k("v_and_b32 v1, 15, v0")
    k("v_bfe_u32 v2, v0, 4, 2")
    k("v_lshlrev_b32 v3, 8, v1")
    k("v_lshl_add_u32 v3, v2, 4, v3")
    k("v_and_b32 v4, 63, v0")
    k("v_lshlrev_b32 v4, 4, v4")
    k("s_add_u32 s31, s28, 4096")
    k("s_waitcnt lgkmcnt(0)")
    T()
    k.srd(8, 4, WS_T1, SZ_T)
    k.srd(12, 4, WS_WT, SZ_WT)
    k.srd(16, 4, WS_T2, SZ_T)
    DIN, WW, F64, F32, TW1, TW2, ACC, TMP = 8, 40, 48, 72, 96, 112, 128, 144
    for mt in range(2):
        for t in range(4):
            k(f"buffer_load_dwordx4 {v(DIN+16*mt+4*t,4)}, v3, s[8:11], s{28 if mt == 0 else 31} offen offset:{64*t}")
    for mt in range(2):
        k(f"buffer_load_dwordx4 {v(WW+4*mt,4)}, v4, s[12:15], s29 offen offset:{1024*mt}")
    k("s_lshl_b32 s32, s3, 4")
    k("v_add_u32 v5, s32, v1")
    k("v_cvt_f32_u32 v5, v5")
    k("v_lshlrev_b32 v6, 2, v2")
    k("v_cvt_f32_u32 v6, v6")
    k("v_cvt_f32_u32 v7, v1")
    def mat(dst, lane_f, lane_add, k_add, N):
        T = TMP
        k(f"v_add_f32 v{T+8}, {f2u(float(lane_add)):#x}, v{lane_f}")
        k(f"v_mul_f32 v{T+8}, {f2u(1.0/N):#x}, v{T+8}")
        for j in range(4):
            k(f"v_add_f32 v{T+9}, {f2u(float(k_add+j)):#x}, v6")
            k(f"v_mul_f32 v{T+9}, v{T+9}, v{T+8}")
            k(f"v_fract_f32 v{T+9}, v{T+9}")
            k(f"v_cos_f32 v{T+j}, v{T+9}")
            k(f"v_sin_f32 v{T+4+j}, v{T+9}")
        k(f"v_cvt_pk_bf16_f32 v{dst+2}, v{T}, v{T+1}")
        k(f"v_cvt_pk_bf16_f32 v{dst+3}, v{T+2}, v{T+3}")
        k(f"v_cvt_pk_bf16_f32 v{dst+4}, v{T+4}, v{T+5}")
        k(f"v_cvt_pk_bf16_f32 v{dst+5}, v{T+6}, v{T+7}")
        k(f"v_xor_b32 v{dst}, 0x80008000, v{dst+4}")
        k(f"v_xor_b32 v{dst+1}, 0x80008000, v{dst+5}")
    for t in range(4): mat(F64+6*t, 5, 0, 16*t, 64)
    for a_ in range(2):
        for b_ in range(2): mat(F32+6*(2*a_+b_), 7, 16*a_, 16*b_, 32)
    k(f"v_mul_f32 v{TMP+8}, {f2u(1.0/2048):#x}, v5")
    for mt in range(2):
        for r in range(4):
            k(f"v_add_f32 v{TMP+9}, {f2u(float(16*mt+r)):#x}, v6")
            k(f"v_mul_f32 v{TMP+9}, v{TMP+9}, v{TMP+8}")
            k(f"v_cos_f32 v{TW1+(mt*4+r)*2}, v{TMP+9}")
            k(f"v_sin_f32 v{TW1+(mt*4+r)*2+1}, v{TMP+9}")
    k("v_cvt_f32_u32 v160, s32")
    k("v_add_f32 v160, v160, v6")
    for nt in range(2):
        k(f"v_add_f32 v{TMP+8}, {f2u(float(16*nt)):#x}, v7")
        k(f"v_mul_f32 v{TMP+8}, {f2u(1.0/2048):#x}, v{TMP+8}")
        for r in range(4):
            k(f"v_add_f32 v{TMP+9}, {f2u(float(r)):#x}, v160")
            k(f"v_mul_f32 v{TMP+9}, v{TMP+9}, v{TMP+8}")
            k(f"v_cos_f32 v{TW2+(nt*4+r)*2}, v{TMP+9}")
            k(f"v_sin_f32 v{TW2+(nt*4+r)*2+1}, v{TMP+9}")
    T()
    k("s_waitcnt vmcnt(2)")
    T()
    Ln, Lz = k.label('norm'), k.label('zero')
    k("s_cmp_lg_u32 s28, 0")
    k(f"s_cbranch_scc1 {Ln}")
    k("s_cmp_eq_u32 s2, 0")
    k(f"s_cbranch_scc1 {Lz}")
    for f in range(8):
        k(f"v_mov_b32 v{DIN+4*f}, v{DIN+4*f+2}")
        k(f"v_mov_b32 v{DIN+4*f+1}, v{DIN+4*f+3}")
    k.place(Lz)
    for f in range(8):
        k(f"v_mov_b32 v{DIN+4*f+2}, 0")
        k(f"v_mov_b32 v{DIN+4*f+3}, 0")
    k.place(Ln)
    def mf(acc, A, B, first):
        k(f"v_mfma_f32_16x16x32_bf16 {v(acc,4)}, {v(A,4)}, {v(B,4)}, {'0' if first else v(acc,4)}")
    RE = lambda m: m+2
    IM = lambda m: m
    for t in range(4):
        for mt in range(2):
            mf(ACC+8*mt, DIN+16*mt+4*t, RE(F64+6*t), t == 0)
            mf(ACC+8*mt+4, DIN+16*mt+4*t, IM(F64+6*t), t == 0)
    def twiddle(TW, dst):
        for tl in range(2):
            for r in range(4):
                re, im, c_, s_ = ACC+8*tl+r, ACC+8*tl+4+r, TW+(tl*4+r)*2, TW+(tl*4+r)*2+1
                k(f"v_mul_f32 v{TMP+r}, v{re}, v{c_}")
                k(f"v_mul_f32 v{TMP+4+r}, v{im}, v{c_}")
                k(f"v_fmac_f32 v{TMP+r}, v{im}, v{s_}")
                k(f"v_fma_f32 v{TMP+4+r}, -v{re}, v{s_}, v{TMP+4+r}")
            for i in range(4):
                k(f"v_cvt_pk_bf16_f32 v{dst+4*tl+i}, v{TMP+2*i}, v{TMP+2*i+1}")
    D2 = DIN
    twiddle(TW1, D2)
    for mt in range(2):
        for mo in range(2):
            mf(ACC+8*mo, RE(F32+6*(2*mo+mt)), D2+4*mt, mt == 0)
            mf(ACC+8*mo+4, IM(F32+6*(2*mo+mt)), D2+4*mt, mt == 0)
    T()
    k("s_waitcnt vmcnt(0)")
    T()
    D3 = DIN+8
    for tl in range(2):
        for r in range(4):
            re, im = ACC+8*tl+r, ACC+8*tl+4+r
            k(f"v_lshlrev_b32 v{TMP+8}, 16, v{WW+4*tl+r}")
            k(f"v_and_b32 v{TMP+9}, 0xffff0000, v{WW+4*tl+r}")
            k(f"v_mul_f32 v{TMP+r}, v{re}, v{TMP+8}")
            k(f"v_mul_f32 v{TMP+4+r}, v{im}, v{TMP+8}")
            k(f"v_fma_f32 v{TMP+r}, -v{im}, v{TMP+9}, v{TMP+r}")
            k(f"v_fma_f32 v{TMP+4+r}, -v{re}, v{TMP+9}, -v{TMP+4+r}")
        for i in range(4):
            k(f"v_cvt_pk_bf16_f32 v{D3+4*tl+i}, v{TMP+2*i}, v{TMP+2*i+1}")
    for mt in range(2):
        for nt in range(2):
            mf(ACC+8*nt, D3+4*mt, RE(F32+6*(2*nt+mt)), mt == 0)
            mf(ACC+8*nt+4, D3+4*mt, IM(F32+6*(2*nt+mt)), mt == 0)
    D4 = DIN+16
    twiddle(TW2, D4)
    k("v_add_u32 v5, s30, v4")
    k(f"ds_write_b128 v5, {v(D4,4)}")
    k(f"ds_write_b128 v5, {v(D4+4,4)} offset:1024")
    k("s_waitcnt lgkmcnt(0)")
    T()
    k("s_barrier")
    T()
    for t in range(4):
        for nt in range(2):
            k(f"ds_read_b128 {v(DIN+16*nt+4*t,4)}, v4 offset:{2048*t+1024*nt}")
    for t in range(4):
        k(f"s_waitcnt lgkmcnt({6-2*t})")
        for nt in range(2):
            mf(ACC+8*nt, RE(F64+6*t), DIN+16*nt+4*t, t == 0)
            mf(ACC+8*nt+4, IM(F64+6*t), DIN+16*nt+4*t, t == 0)
    k("s_lshl_b32 s33, s3, 6")
    k("s_add_u32 s33, s33, s28")
    k("s_add_u32 s34, s33, 4096")
    for nt in range(2):
        k(f"v_cvt_pk_bf16_f32 v{TMP+4*nt}, v{ACC+8*nt}, v{ACC+8*nt+1}")
        k(f"v_cvt_pk_bf16_f32 v{TMP+4*nt+1}, v{ACC+8*nt+2}, v{ACC+8*nt+3}")
        k(f"v_cvt_pk_bf16_f32 v{TMP+4*nt+2}, -v{ACC+8*nt+4}, -v{ACC+8*nt+5}")
        k(f"v_cvt_pk_bf16_f32 v{TMP+4*nt+3}, -v{ACC+8*nt+6}, -v{ACC+8*nt+7}")
    Ls = k.label('spec')
    k("s_cmp_eq_u32 s28, 0")
    k(f"s_cbranch_scc1 {Ls}")
    k(f"buffer_store_dwordx4 {v(TMP,4)}, v3, s[16:19], s33 offen")
    k(f"buffer_store_dwordx4 {v(TMP+4,4)}, v3, s[16:19], s34 offen")
    T(); T.flush(tv=1)
    k("s_endpgm")
    k.place(Ls)
    k("s_cmp_eq_u32 s2, 288")
    k("s_cselect_b32 s35, 8, 0")
    k("s_add_u32 s33, s33, s35")
    k("s_add_u32 s34, s34, s35")
    k(f"buffer_store_dwordx2 {v(TMP,2)}, v3, s[16:19], s33 offen")
    k(f"buffer_store_dwordx2 {v(TMP+4,2)}, v3, s[16:19], s34 offen")
    k.place(Lend)
    k("s_endpgm")
    return k

def k3():
    HS = 2320
    YOFF = 18432
    k = Kern('k3_irdft_kernel', 128, 576, YOFF + 16*HS, vgpr=168)
    Lend, Lnr = k.label('end'), k.label('nr')
    T_ = Stamps(k, 'k3'); T_.real(); T_()
    k(f"s_load_dwordx2 s[4:5], s[0:1], {KA_WS}")
    k(f"s_load_dwordx2 s[6:7], s[0:1], {KA_X}")
    k("v_lshrrev_b32 v1, 6, v0")
    k("v_readfirstlane_b32 s3, v1")
    k("s_cmp_ge_u32 s2, 128")
    k(f"s_cbranch_scc1 {Lend}")
    k("v_and_b32 v5, 63, v0")
    k("v_lshrrev_b32 v1, 2, v5")
    k("v_lshlrev_b32 v1, 13, v1")
    k("v_and_b32 v2, 3, v0")
    k("v_lshl_add_u32 v1, v2, 4, v1")
    k("v_lshlrev_b32 v5, 4, v5")
    k("s_lshl_b32 s28, s3, 18")
    k("s_lshl_b32 s29, s2, 6")
    k("s_add_u32 s28, s28, s29")
    k(f"s_add_u32 s29, s28, {16*8192 - 1024}")
    k("s_lshl_b32 s30, s3, 11")
    k("s_mov_b32 m0, s30")
    k("s_waitcnt lgkmcnt(0)")
    T_()
    k.srd(8, 4, WS_T2, SZ_T)
    k.srd(16, 4, WS_TAB, SZ_TAB)
    k("buffer_load_dwordx4 v1, s[8:11], s28 offen lds")
    k("buffer_load_dwordx4 v1, s[8:11], s29 offen offset:1024 lds")
    B0, BX, AF, ACC = 8, 88, 104, 140
    k(f"s_mul_i32 s34, s3, {9*1024}")
    def load5(dst, sreg):
        for i in range(5):
            if i == 4:
                k(f"s_add_u32 s{sreg}, s{sreg}, 4096")
                k(f"buffer_load_dwordx4 {v(dst+4*i,4)}, v5, s[16:19], s{sreg} offen")
            else:
                k(f"buffer_load_dwordx4 {v(dst+4*i,4)}, v5, s[16:19], s{sreg} offen offset:{1024*i}")
    for par in range(2):
        k(f"s_add_u32 s35, s34, {tab_off(1,par,0,0)}")
        load5(B0+40*par, 35)
        k(f"s_add_u32 s35, s34, {tab_off(1,par,9,4)}")
        load5(B0+40*par+20, 35)
    k("v_bfe_u32 v3, v0, 4, 2")
    k("v_bfe_u32 v4, v0, 2, 2")
    k("v_lshl_add_u32 v4, v3, 3, v4")
    k("v_lshlrev_b32 v4, 6, v4")
    k("v_lshl_add_u32 v4, v2, 4, v4")
    k("v_cmp_le_u32 vcc, 2, v3")
    k(f"v_add_u32 v6, {128*64}, v4")
    k(f"v_add_u32 v7, {(128-144)*64+8 & 0xffffffff:#x}, v4")
    k("v_cndmask_b32 v6, v6, v7, vcc")
    T_()
    k("s_waitcnt vmcnt(20)")
    T_()
    Lx = k.label('x')
    k("s_cmp_lg_u32 s3, 0")
    k(f"s_cbranch_scc1 {Lx}")
    k(f"s_mov_b32 s35, {tab_off(1,0,9,0)}")
    for i in range(4):
        k(f"buffer_load_dwordx4 {v(BX+4*i,4)}, v5, s[16:19], s35 offen offset:{1024*i}")
    k.place(Lx)
    k("s_barrier")
    T_()
    def mf(acc, A, B, first):
        k(f"v_mfma_f32_16x16x32_bf16 {v(acc,4)}, {v(A,4)}, {v(B,4)}, {'0' if first else v(acc,4)}")
    for par in (1, 0):
        for ks in range(9):
            for hh in range(2):
                if ks == 4:
                    k(f"ds_read_b64_tr_b16 {v(AF+4*ks+2*hh,2)}, v6 offset:{par*144*64 + 4*hh*64}")
                else:
                    part = 1 if ks > 4 else 0
                    k(f"ds_read_b64_tr_b16 {v(AF+4*ks+2*hh,2)}, v4 offset:{par*144*64 + (32*ks+4*hh-144*part)*64 + 8*part}")
            if ks == 5: k("s_waitcnt lgkmcnt(4)")
        k("s_waitcnt vmcnt(0) lgkmcnt(0)")
        T_()
        for i in range(5):
            mf(ACC+4*par, AF+4*i, B0+40*par+4*i, i == 0)
            mf(ACC+8+4*par, AF+4*(4+i), B0+40*par+20+4*i, i == 0)
    Ly = k.label('y')
    k("s_cmp_lg_u32 s3, 0")
    k(f"s_cbranch_scc1 {Ly}")
    for i in range(4):
        mf(ACC+8, AF+4*i, BX+4*i, False)
    k.place(Ly)
    k("v_and_b32 v1, 15, v0")
    k("s_lshl_b32 s31, s3, 4")
    k("v_add_u32 v1, s31, v1")
    k("v_cmp_eq_u32 vcc, 0, v1")
    k("v_lshlrev_b32 v1, 2, v1")
    k(f"v_mul_u32_u24 v2, {4*HS}, v3")
    k("v_cndmask_b32 v8, 1.0, 0, vcc" if False else "v_mov_b32 v8, 1.0")
    k("v_cndmask_b32 v8, v8, 0, vcc" if False else "v_cndmask_b32_e64 v8, 1.0, 0, vcc")
    k("v_cndmask_b32_e64 v9, -1.0, 1.0, vcc")
    k("v_add_u32 v10, v2, v1")
    k("v_sub_u32 v11, v2, v1")
    k("v_add_u32 v12, 1152, v11")
    k("v_add_u32 v11, 2304, v11")
    k("v_add_u32 v13, 1152, v10")
    k(f"v_add_u32 v14, {144*4}, v2")
    k("v_cndmask_b32 v11, v11, v14, vcc")
    k(f"v_add_u32 v14, {432*4}, v2")
    k("v_cndmask_b32 v13, v13, v14, vcc")
    for r in range(4):
        T = 16 + 8*r
        A_, B_, C_, D_ = ACC+r, ACC+4+r, ACC+8+r, ACC+12+r
        k(f"v_add_f32 v{T}, v{A_}, v{B_}")
        k(f"v_sub_f32 v{T+1}, v{A_}, v{B_}")
        k(f"v_add_f32 v{T+2}, v{C_}, v{D_}")
        k(f"v_sub_f32 v{T+3}, v{C_}, v{D_}")
        k(f"v_fma_f32 v{T+4}, v8, v{T+2}, v{T}")
        k(f"v_mul_f32 v{T+5}, v8, v{T}")
        k(f"v_fmac_f32 v{T+5}, v9, v{T+2}")
        k(f"v_fma_f32 v{T+6}, -v8, v{T+3}, v{T+1}")
        k(f"v_fma_f32 v{T+7}, v8, v{T+1}, v{T+3}")
        k(f"ds_write_b32 v10, v{T+4} offset:{YOFF+r*HS}")
        k(f"ds_write_b32 v11, v{T+5} offset:{YOFF+r*HS}")
        k(f"ds_write_b32 v12, v{T+6} offset:{YOFF+r*HS}")
        k(f"ds_write_b32 v13, v{T+7} offset:{YOFF+r*HS}")
        if r == 2: k("s_waitcnt lgkmcnt(4)")
    k("s_cmp_ge_u32 s3, 4")
    k(f"s_cbranch_scc1 {Lnr}")
    k.srd(8, 6, 0, SZ_X)
    k.srd(12, 4, WS_MOD, SZ_MOD)
    k.srd(20, 4, WS_X1, SZ_X)
    k.srd(24, 4, WS_H2, SZ_X)
    k("v_lshrrev_b32 v1, 4, v0")
    k("v_and_b32 v2, 15, v0")
    k("s_and_b32 s30, s2, 3")
    k("s_lshl_b32 s30, s30, 9")
    k("s_lshr_b32 s31, s2, 2")
    k("s_add_u32 s30, s30, s31")
    k("s_mul_i32 s30, s30, 1152")
    k("v_mul_u32_u24 v3, 36864, v1")
    k("v_lshl_add_u32 v3, v2, 3, v3")
    k("v_lshlrev_b32 v4, 4, v2")
    XR, GA, SB, CB = 48, 66, 102, 12
    for i in range(9):
        k(f"buffer_load_dwordx2 {v(XR+2*i,2)}, v3, s[8:11], s30 offen offset:{128*i}")
    k(f"s_movk_i32 s32, {2*2304}")
    for i in range(9):
        k(f"buffer_load_dwordx4 {v(GA+4*i,4)}, v4, s[12:15], s32 offen offset:{256*i}")
    k(f"s_movk_i32 s32, {3*2304}")
    for i in range(9):
        k(f"buffer_load_dwordx4 {v(SB+4*i,4)}, v4, s[12:15], s32 offen offset:{256*i}")
    k.place(Lnr)
    T_()
    k("s_waitcnt lgkmcnt(0)")
    k("s_barrier")
    T_()
    k("s_cmp_ge_u32 s3, 4")
    k(f"s_cbranch_scc1 {Lend}")
    Y = 12
    k(f"v_mul_u32_u24 v8, {HS}, v1")
    k("v_lshl_add_u32 v9, v2, 4, v8")
    for i in range(9):
        k(f"ds_read_b128 {v(Y+4*i,4)}, v9 offset:{YOFF+256*i}")
    k(f"s_mov_b32 s33, {f2u(2.0/(576*2048)):#x}")
    k("s_waitcnt vmcnt(9) lgkmcnt(0)")
    T_()
    for i in range(36):
        k(f"v_mul_f32 v{Y+i}, s33, v{Y+i}")
    for i in range(18):
        k(f"v_lshlrev_b32 v10, 16, v{XR+i}")
        k(f"v_and_b32 v11, 0xffff0000, v{XR+i}")
        k(f"v_fmac_f32 v10, v{GA+2*i}, v{Y+2*i}")
        k(f"v_fmac_f32 v11, v{GA+2*i+1}, v{Y+2*i+1}")
        k(f"v_cvt_pk_bf16_f32 v{XR+i}, v10, v11")
    k(f"s_movk_i32 s32, {4*2304}")
    for i in range(9):
        k(f"buffer_load_dwordx4 {v(CB+4*i,4)}, v4, s[12:15], s32 offen offset:{256*i}")
    k("v_lshrrev_b32 v8, 1, v2")
    k("v_lshlrev_b32 v8, 9, v8")
    k("v_lshl_add_u32 v8, v1, 4, v8")
    k("v_and_b32 v9, 1, v2")
    k("v_lshl_add_u32 v8, v9, 3, v8")
    k("s_lshr_b32 s34, s2, 1")
    k("s_mul_i32 s34, s34, 36864")
    k("s_and_b32 s35, s2, 1")
    k("s_lshl_b32 s35, s35, 8")
    k("s_add_u32 s34, s34, s35")
    for i in range(9):
        k(f"buffer_store_dwordx2 {v(XR+2*i,2)}, v8, s[20:23], s34 offen")
        k("s_add_u32 s34, s34, 4096")
    X = GA
    for i in range(18):
        k(f"v_lshlrev_b32 v{X+2*i}, 16, v{XR+i}")
        k(f"v_and_b32 v{X+2*i+1}, 0xffff0000, v{XR+i}")
    ln_stats(k, X, 36, 6, 7, 8)
    for i in range(36):
        k(f"v_fma_f32 v{X+i}, v{X+i}, v7, v6")
    T_()
    k("s_waitcnt vmcnt(9)")
    T_()
    for i in range(36):
        k(f"v_fma_f32 v{X+i}, v{X+i}, v{CB+i}, v{SB+i}")
    HO = 140
    for i in range(18):
        k(f"v_cvt_pk_bf16_f32 v{HO+i}, v{X+2*i}, v{X+2*i+1}")
    k("v_lshrrev_b32 v8, 3, v2")
    k("v_lshlrev_b32 v8, 10, v8")
    k("v_lshl_add_u32 v8, v1, 4, v8")
    k("v_and_b32 v9, 3, v2")
    k("v_lshl_add_u32 v8, v9, 8, v8")
    k("v_bfe_u32 v9, v2, 2, 1")
    k("v_lshl_add_u32 v8, v9, 3, v8")
    k("s_mul_i32 s34, s2, 18432")
    for i in range(9):
        k(f"buffer_store_dwordx2 {v(HO+2*i,2)}, v8, s[24:27], s34 offen")
        if i < 8: k("s_add_u32 s34, s34, 2048")
    T_(); T_.flush(tv=1)
    k.place(Lend)
    k("s_endpgm")
    return k

class VQ:
    def __init__(self): self.q = []
    def issue(self, tag): self.q.append(tag); assert len(self.q) <= 63, "vmcnt overflow"
    def wait_for(self, pred):
        last = -1
        for i, t in enumerate(self.q):
            if pred(t): last = i
        if last < 0: return None
        n = len(self.q) - 1 - last
        self.q = self.q[last+1:]
        return n

class Sched:
    def __init__(self, k): self.k = k; self.lo = []
    def add(self, items): self.lo += items
    def pop(self, n):
        for _ in range(n):
            if not self.lo: return
            x = self.lo.pop(0)
            if callable(x): x()
            else: self.k(x)

def k4():
    STG = 12288; RING = 13; UOFF = 6144
    k = Kern('k4_up_kernel', 256, 256, STG*RING, vgpr=256, agpr=256)
    Lend = k.label('end')
    k(f"s_load_dwordx2 s[4:5], s[0:1], {KA_WS}")
    k(f"s_load_dwordx4 s[8:11], s[0:1], {KA_WG}")
    T = Stamps(k, 'k4'); T.real(); T()
    k("v_lshrrev_b32 v1, 6, v0")
    k("v_readfirstlane_b32 s3, v1")
    k("s_cmp_ge_u32 s2, 256")
    k(f"s_cbranch_scc1 {Lend}")
    if K4MAP == 0:
        k("s_and_b32 s28, s2, 7"); k("s_lshl_b32 s28, s28, 2"); k("s_bfe_u32 s29, s2, 0x20003")
        k("s_add_u32 s28, s28, s29"); k("s_lshr_b32 s29, s2, 5")
    else:
        k("s_and_b32 s28, s2, 3"); k("s_lshl_b32 s28, s28, 3"); k("s_bfe_u32 s29, s2, 0x30003")
        k("s_add_u32 s28, s28, s29"); k("s_and_b32 s29, s2, 4"); k("s_lshr_b32 s30, s2, 6"); k("s_add_u32 s29, s29, s30")
    AFR, NB, LA = 224, 4, 3
    VL, VD1, VD2, VBE, VBO, VB2, VCE, VCO, VL8 = 240, 241, 244, 247, 248, 249, 250, 251, 252
    k("s_and_b32 s41, s28, 1")
    k("v_and_b32 v1, 63, v0")
    k(f"v_lshlrev_b32 v{VL}, 4, v1")
    k(f"v_lshlrev_b32 v{VL8}, 3, v1")
    for i in range(3):
        k(f"v_add_u32 v2, {64*i}, v1")
        k(f"v_mul_u32_u24 v3, 43691, v2")
        k(f"v_lshrrev_b32 v3, 19, v3")
        k(f"v_mul_u32_u24 v4, 12, v3")
        k(f"v_sub_u32 v4, v2, v4")
        k(f"v_lshlrev_b32 v4, 4, v4")
        k(f"v_and_b32 v5, 4, v3")
        k(f"v_lshlrev_b32 v5, 3, v5")
        k(f"v_xor_b32 v4, v4, v5")
        k(f"v_mul_u32_u24 v3, 9216, v3")
        k(f"v_add_u32 v3, v3, v4")
        k(f"v_subrev_u32 v{VD1+i}, {1024*i}, v3")
    k("s_waitcnt lgkmcnt(0)")
    k("s_cmp_ge_u32 s3, 2")
    k("s_cselect_b32 s12, s10, s8")
    k("s_cselect_b32 s13, s11, s9")
    k(f"s_mov_b32 s14, {576*4608*2:#x}")
    k("s_mov_b32 s15, 0x20000")
    k("s_mul_i32 s31, s3, 3072")
    k("s_and_b32 s30, s3, 1")
    k("s_mul_i32 s33, s28, 288")
    k(f"s_mul_i32 s32, s30, {16*9216}")
    k("s_add_u32 s32, s32, s33")
    k("s_mul_i32 s42, s41, 96")
    k("s_add_u32 s32, s32, s42")
    k(f"s_mul_i32 s43, s30, {32*9216}")
    k("s_add_u32 s43, s43, s33")
    k("s_lshl_b32 s42, s42, 1")
    k("s_sub_u32 s42, 192, s42")
    k("s_add_u32 s43, s43, s42")
    k.srd(16, 4, WS_H2, SZ_X)
    k("s_lshl_b32 s34, s29, 4")
    k("s_lshl_b32 s35, s3, 2")
    k("s_add_u32 s34, s34, s35")
    k("s_mul_i32 s35, s34, 18432")
    q = VQ()
    def hreg(ks, nt):
        i = ks*4+nt
        return a(4*i, 4) if i < 64 else v(192 + 4*(i-64), 4)
    def dma_items(st):
        out = []
        if st < 18: sb, off, vd = 32, st*32*9216, VD1
        else: sb, off, vd = 43, (st-18)*64*9216, VD2
        for i in range(3):
            def f(i=i):
                if i == 0:
                    k(f"s_add_u32 m0, s31, {(st % RING)*STG}")
                    k(f"s_add_u32 s38, s{sb}, {off}")
                k(f"buffer_load_dwordx4 v{vd+i}, s[12:15], s38 offen offset:{1024*i} lds")
                q.issue(('w', st))
            out.append(f)
        return out
    def h_items(ks):
        out = []
        for nt in range(4):
            def f(nt=nt):
                k(f"s_add_u32 s39, s35, {nt*18432 + ks*1024}")
                k(f"buffer_load_dwordx4 {hreg(ks, nt)}, v{VL}, s[16:19], s39 offen")
                q.issue(('h', ks))
            out.append(f)
        return out
    PRE = K4PRE
    for st in range(PRE):
        for f in dma_items(st) + h_items(st): f()
    for i in range(3):
        k(f"v_add_u32 v2, {64*i}, v1")
        k(f"v_mul_u32_u24 v3, 43691, v2")
        k(f"v_lshrrev_b32 v3, 18, v3")
        k(f"v_mul_u32_u24 v4, 6, v3")
        k(f"v_sub_u32 v4, v2, v4")
        k(f"v_lshl_add_u32 v4, s41, 1, v4")
        k(f"v_subrev_u32 v5, 6, v4")
        k(f"v_min_u32 v4, v4, v5")
        k(f"v_mul_u32_u24 v3, 9216, v3")
        k(f"v_lshl_add_u32 v3, v4, 4, v3")
        k(f"v_subrev_u32 v{VD2+i}, {1024*i}, v3")
    k("v_bfe_u32 v2, v0, 2, 4")
    k("v_and_b32 v4, 3, v0")
    k("v_lshlrev_b32 v4, 3, v4")
    k("v_mul_u32_u24 v3, 96, v2")
    k(f"v_add_u32 v{VB2}, v3, v4")
    k("v_lshl_add_u32 v3, v3, 1, v4")
    k("v_and_b32 v5, 16, v0")
    k("v_lshlrev_b32 v5, 1, v5")
    k(f"v_add_u32 v{VBE}, v3, v5")
    k(f"v_sub_u32 v{VBO}, v3, v5")
    k.srd(20, 4, WS_P, SZ_P)
    k(f"s_mul_i32 s36, s34, {144*1024}")
    k(f"s_mul_i32 s37, s28, 4608")
    k("s_add_u32 s36, s36, s37")
    k("s_mul_i32 s37, s41, 1536")
    k("s_add_u32 s37, s37, s36")
    k("s_mul_i32 s40, s41, 2560")
    k("s_sub_u32 s40, s36, s40")
    k("s_add_u32 s40, s40, 3072")
    k("s_lshl_b32 s42, s41, 12")
    k("s_sub_u32 s36, s36, s42")
    k("s_add_u32 s36, s36, 4096")
    T()
    frs = []
    for ks in range(18):
        for t in range(6):
            for m in range(2): frs.append((ks, ks, t, m))
    for ks in range(18):
        for t in range(3):
            for m in range(2): frs.append((18 + ks//2, ks, 6+t, m))
    def accb(t, m): return 32*(t % 6) + 16*m
    def aread(fi):
        st, ks, t, m = frs[fi]
        out = []
        for hh in range(2):
            if t < 6: out.append(f"ds_read_b64_tr_b16 {v(AFR+4*(fi % NB)+2*hh,2)}, v{VCO if t & 1 else VCE} offset:{m*UOFF + 16*hh*192 + 32*t}")
            else: out.append(f"ds_read_b64_tr_b16 {v(AFR+4*(fi % NB)+2*hh,2)}, v{VCE} offset:{m*UOFF + ((ks & 1)*32+16*hh)*96 + 32*(t-6)}")
        return out
    NST = 27
    syncs = K4SYNC
    state = {'nd': PRE, 'nh': PRE, 'free': RING - 1}
    def enter(st):
        if st in syncs:
            nxt = min([x for x in syncs if x > st] + [NST])
            assert state['nd'] >= nxt and not any(getattr(f, 'st', 99) < nxt for f in vm), (st, nxt, state)
            n = q.wait_for(lambda t: t[0] == 'w' and t[1] < nxt)
            if n is not None: k(f"s_waitcnt vmcnt({n})")
            k("s_barrier")
            state['free'] = max(state['free'], st - 2 + RING)
        if st < 18:
            k(f"v_add_u32 v{VCE}, {(st % RING)*STG}, v{VBE}")
            k(f"v_add_u32 v{VCO}, {(st % RING)*STG}, v{VBO}")
        else:
            k(f"v_add_u32 v{VCE}, {(st % RING)*STG}, v{VB2}")
    def epi_pair(t0, sreg, soff):
        out = []
        for nt in range(4):
            for tt in range(2):
                gq, uq = accb(t0+tt, 0)+4*nt, accb(t0+tt, 1)+4*nt
                for r in range(4): out.append(f"v_mul_f32 v{gq+r}, v{gq+r}, v{uq+r}")
            d = accb(t0, 1)+4*nt
            for tt in range(2):
                gq = accb(t0+tt, 0)+4*nt
                out.append(f"v_cvt_pk_bf16_f32 v{d+2*tt}, v{gq}, v{gq+1}")
                out.append(f"v_cvt_pk_bf16_f32 v{d+2*tt+1}, v{gq+2}, v{gq+3}")
            def f(nt=nt, d=d):
                k(f"s_add_u32 s44, s{sreg}, {soff + nt*144*1024}" if not T.on else f"s_add_u32 s2, s{sreg}, {soff + nt*144*1024}" if False else f"s_add_u32 s30, s{sreg}, {soff + nt*144*1024}")
                k(f"buffer_store_dwordx4 {v(d,4)}, v{VL}, s[20:23], s{44 if not T.on else 30} offen {PST}")
                q.issue(('s', 0))
            out.append(f)
        return out
    def epi_single(t0):
        out = []
        for nt in range(4):
            gq, uq = accb(t0, 0)+4*nt, accb(t0, 1)+4*nt
            for r in range(4): out.append(f"v_mul_f32 v{gq+r}, v{gq+r}, v{uq+r}")
            out.append(f"v_cvt_pk_bf16_f32 v{uq}, v{gq}, v{gq+1}")
            out.append(f"v_cvt_pk_bf16_f32 v{uq+1}, v{gq+2}, v{gq+3}")
            out.append(f"s_add_u32 s33, s36, {nt*144*1024}")
            out.append(f"buffer_store_dwordx2 {v(uq,2)}, v{VL8}, s[20:23], s33 offen {PST}")
        return out
    vm = []
    S = Sched(k)
    def refill(st):
        while len(vm) < 8:
            if state['nh'] < 18 and state['nh'] <= state['nd'] - 1 and state['nh'] <= st + K4HLA:
                vm.extend(h_items(state['nh'])); state['nh'] += 1
            elif state['nd'] < NST and state['nd'] <= state['free'] and state['nd'] <= st + (K4HLA if state['nh'] < 18 else 99):
                it = dma_items(state['nd'])
                for f in it: f.st = state['nd']
                vm.extend(it); state['nd'] += 1
            else: break
    enter(0)
    for fi in range(LA):
        for x in aread(fi): k(x)
    lastks = -1
    for fi, (st, ks, t, m) in enumerate(frs):
        nx = fi + LA
        rd = []
        if nx < len(frs):
            if frs[nx][0] != frs[nx-1][0]:
                enter(frs[nx][0])
                if frs[nx][0] in (2, 4, 6, 8, 10, 12, 14, 16, 18, 20, 22, 24, 26) and T.on:
                    T(); k("s_waitcnt lgkmcnt(0)")
            rd = aread(nx)
        if st < 18 and t == 0 and m == 0:
            assert state['nh'] > ks
            while any(True for f in vm if getattr(f, 'hk', None) == ks): vm.pop(0)()
            n = q.wait_for(lambda tg: tg[0] == 'h' and tg[1] == ks)
            if n is not None: k(f"s_waitcnt vmcnt({n})")
        if fi == 216:
            for x in epi_pair(0, 37, 0) + epi_pair(2, 37, 1024):
                x() if callable(x) else k(x)
            S.add(epi_pair(4, 37, 2048))
        rem = min(LA - 1, len(frs) - 1 - fi)
        k(f"s_waitcnt lgkmcnt({2*rem})")
        for nt in range(4):
            c = accb(t, m) + 4*nt
            k(f"v_mfma_f32_16x16x32_bf16 {v(c,4)}, {v(AFR+4*(fi % NB),4)}, {hreg(ks,nt)}, {'0' if ks == 0 else v(c,4)}")
            if nt < 2 and rd: k(rd.pop(0))
            if nt == 2:
                refill(st)
                if vm and len(q.q) < 60: vm.pop(0)()
            if nt >= 2: S.pop(2 if nt == 3 else 1)
    assert state['nd'] == NST and not vm and not S.lo
    T()
    for x in epi_pair(6, 40, 0) + epi_single(8):
        x() if callable(x) else k(x)
    T.flush()
    k.place(Lend)
    k("s_endpgm")
    return k

def k5():
    STG = 36864; RING = 4
    k = Kern('k5_down_kernel', 256, 256, STG*RING, vgpr=236)
    Lend = k.label('end')
    k(f"s_load_dwordx2 s[4:5], s[0:1], {KA_WS}")
    k(f"s_load_dwordx2 s[8:9], s[0:1], {KA_WD}")
    T = Stamps(k, 'k5'); T.real(); T()
    k("v_lshrrev_b32 v1, 6, v0")
    k("v_readfirstlane_b32 s3, v1")
    k("s_cmp_ge_u32 s2, 256")
    k(f"s_cbranch_scc1 {Lend}")
    k("s_and_b32 s28, s2, 3")
    k("s_bfe_u32 s29, s2, 0x10002")
    k("s_lshl_b32 s29, s29, 3")
    k("s_bfe_u32 s30, s2, 0x30003")
    k("s_add_u32 s29, s29, s30")
    k("s_lshr_b32 s30, s2, 6")
    ACC, PB, AFR, VD, VL, VL8, VB, VC = 8, 80, 192, 216, 225, 226, 227, 228
    PD = 14; NB = 6; LA = 4
    k("v_and_b32 v1, 63, v0")
    k(f"v_lshlrev_b32 v{VL}, 4, v1")
    k(f"v_lshlrev_b32 v{VL8}, 3, v1")
    for i in range(9):
        k(f"v_add_u32 v2, {256*i}, v0")
        k(f"v_mul_u32_u24 v3, 3641, v2")
        k(f"v_lshrrev_b32 v3, 16, v3")
        k(f"v_mul_u32_u24 v4, 18, v3")
        k(f"v_sub_u32 v4, v2, v4")
        k(f"v_mul_u32_u24 v3, 1152, v3")
        k(f"v_lshl_add_u32 v{VD+i}, v4, 4, v3")
    k("s_waitcnt lgkmcnt(0)")
    k.srd(12, 8, 0, 4608*576*2)
    k.srd(16, 4, WS_P, SZ_P)
    k("s_lshl_b32 s31, s3, 10")
    k(f"s_mul_i32 s32, s28, {1152*1152}")
    k("s_mul_i32 s33, s30, 288")
    k("s_add_u32 s32, s32, s33")
    k("s_lshl_b32 s34, s29, 2")
    k("s_add_u32 s34, s34, s3")
    k(f"s_mul_i32 s35, s34, {288*1024}")
    k(f"s_mul_i32 s36, s28, {36*1024}")
    k("s_add_u32 s35, s35, s36")
    k(f"s_add_u32 s36, s35, {144*1024}")
    q = VQ()
    def preg(ks, nt): return PB + 8*(ks % PD) + 4*nt
    def dma_item(st, i):
        def f():
            k(f"s_add_u32 m0, s31, {(st % RING)*STG + 4096*i}")
            k(f"s_add_u32 s38, s32, {st*128*1152}")
            k(f"buffer_load_dwordx4 v{VD+i}, s[12:15], s38 offen lds")
            q.issue(('w', st*9+i))
        f.tag = ('w', st*9+i)
        return f
    def p_item(ks, nt):
        def f():
            k(f"s_add_u32 s39, s{35+nt}, {ks*1024}")
            if ks % 9 == 4:
                k(f"buffer_load_dwordx2 {v(preg(ks,nt),2)}, v{VL8}, s[16:19], s39 offen"); q.issue(('p', ks))
                k(f"buffer_load_dwordx2 {v(preg(ks,nt)+2,2)}, v{VL8}, s[16:19], s39 offen offset:512"); q.issue(('p', ks))
            else:
                k(f"buffer_load_dwordx4 {v(preg(ks,nt),4)}, v{VL}, s[16:19], s39 offen"); q.issue(('p', ks))
        f.tag = ('p', ks)
        return f
    order = []
    nw = 0
    def wneed(ks): return (ks // 4)*9 + (9*(ks % 4) + 8)//4
    for ks in range(36):
        while nw <= wneed(ks):
            order.append(dma_item(nw // 9, nw % 9)); nw += 1
        order += [p_item(ks, 0), p_item(ks, 1)]
    def can_issue(f, cur_ks, freest):
        if f.tag[0] == 'w': return f.tag[1] // 9 <= freest
        return f.tag[1] <= cur_ks + PD - 1
    freest = RING - 1
    npre = 0
    while order and order[0].tag != ('p', K5PRE): order.pop(0)()
    k("v_bfe_u32 v4, v0, 2, 4")
    k("v_mul_u32_u24 v4, 288, v4")
    k("v_and_b32 v5, 3, v0")
    k(f"v_lshl_add_u32 v{VB}, v5, 3, v4")
    k.srd(20, 4, WS_PART, SZ_PART)
    T()
    frs = [(ks, dt) for ks in range(36) for dt in range(9)]
    def aread(fi):
        ks, dt = frs[fi]
        return [f"ds_read_b64_tr_b16 {v(AFR+4*(fi % NB)+2*hh,2)}, v{VC} offset:{(32*(ks % 4)+16*hh)*288+32*dt}" for hh in range(2)]
    syncs = K5SYNC
    def enter(ks):
        nonlocal freest
        if ks in syncs:
            nxt = min([x for x in syncs if x > ks] + [36])
            need = wneed(nxt-1)
            while any(f.tag[0] == 'w' and f.tag[1] <= need for f in order):
                f = order.pop(0); assert can_issue(f, ks-1, freest), (ks, f.tag); f()
            n = q.wait_for(lambda t: t[0] == 'w' and t[1] <= need)
            if n is not None: k(f"s_waitcnt vmcnt({n})")
            k("s_barrier")
            freest = max(freest, (ks-1)//4 - 1 + RING)
        if ks % 4 == 0: k(f"v_add_u32 v{VC}, {((ks//4) % RING)*STG}, v{VB}")
    enter(0)
    for fi in range(LA):
        for x in aread(fi): k(x)
    for fi, (ks, dt) in enumerate(frs):
        nx = fi + LA
        rd = []
        if nx < len(frs):
            if frs[nx][1] == 0:
                enter(frs[nx][0])
                if T.on and frs[nx][0] % 2 == 0:
                    T(); k("s_waitcnt lgkmcnt(0)")
            rd = aread(nx)
        if dt == 0:
            assert not any(f.tag == ('p', ks) for f in order)
            n = q.wait_for(lambda t: t == ('p', ks))
            if n is not None: k(f"s_waitcnt vmcnt({n})")
        rem = min(LA - 1, len(frs)-1-fi)
        k(f"s_waitcnt lgkmcnt({2*rem})")
        for nt in range(2):
            c = ACC + 8*dt + 4*nt
            k(f"v_mfma_f32_16x16x32_bf16 {v(c,4)}, {v(AFR+4*(fi % NB),4)}, {v(preg(ks,nt),4)}, {'0' if ks == 0 else v(c,4)}")
            if rd: k(rd.pop(0))
        if dt in K5SLOTS and order and can_issue(order[0], ks if dt > 0 else ks-1, freest) and len(q.q) < 60:
            order.pop(0)()
    assert not order
    T()
    k("s_lshl_b32 s36, s28, 6")
    k("s_add_u32 s36, s36, s34")
    k("s_mul_i32 s36, s36, 36")
    k("s_mul_i32 s37, s30, 9")
    k("s_add_u32 s36, s36, s37")
    k("s_lshl_b32 s36, s36, 10")
    for dt in range(9):
        c = ACC + 8*dt; d = PB + 4*dt
        k(f"v_cvt_pk_bf16_f32 v{d}, v{c}, v{c+1}")
        k(f"v_cvt_pk_bf16_f32 v{d+1}, v{c+2}, v{c+3}")
        k(f"v_cvt_pk_bf16_f32 v{d+2}, v{c+4}, v{c+5}")
        k(f"v_cvt_pk_bf16_f32 v{d+3}, v{c+6}, v{c+7}")
    for dt in range(9):
        d = PB + 4*dt
        k(f"v_permlane16_swap_b32 v{d}, v{d+2}")
        k(f"v_permlane16_swap_b32 v{d+1}, v{d+3}")
        if dt % 4 == 0 and dt: k("s_add_u32 s36, s36, 4096")
        k(f"buffer_store_dwordx4 {v(d,4)}, v{VL}, s[20:23], s36 offen offset:{1024*(dt%4)} {PST}")
    T()
    T.flush()
    k.place(Lend)
    k("s_endpgm")
    return k

def k6():
    k = Kern('k6_fin_kernel', 576, 256, 0, vgpr=48)
    Lend = k.label('end')
    k(f"s_load_dwordx2 s[4:5], s[0:1], {KA_WS}")
    k(f"s_load_dwordx2 s[6:7], s[0:1], {KA_OUT}")
    k("s_cmp_ge_u32 s2, 576")
    k(f"s_cbranch_scc1 {Lend}")
    k("v_lshlrev_b32 v1, 4, v0")
    k("s_lshl_b32 s28, s2, 12")
    k("s_mul_i32 s29, s2, 7282")
    k("s_lshr_b32 s29, s29, 16")
    k("s_mul_i32 s30, s29, 9")
    k("s_sub_u32 s30, s2, s30")
    k("v_lshrrev_b32 v2, 5, v0")
    k("v_lshlrev_b32 v3, 5, v2")
    k("v_and_b32 v4, 31, v0")
    k(f"v_mul_u32_u24 v4, {32*1152}, v4")
    k("v_lshl_add_u32 v4, v2, 4, v4")
    k("s_and_b32 s31, s29, 1")
    k("s_lshl_b32 s31, s31, 10")
    k("s_lshr_b32 s32, s29, 1")
    k("s_add_u32 s31, s31, s32")
    k("s_mul_i32 s31, s31, 1152")
    k("s_lshl_b32 s32, s30, 7")
    k("s_add_u32 s31, s31, s32")
    k("s_lshl_b32 s32, s30, 8")
    k(f"s_add_u32 s32, s32, {5*2304}")
    k("s_waitcnt lgkmcnt(0)")
    k.srd(8, 4, WS_PART, SZ_PART)
    k.srd(16, 4, WS_X1, SZ_X)
    k.srd(12, 4, WS_MOD, SZ_MOD)
    k.srd(20, 6, 0, SZ_X)
    k("buffer_load_dwordx4 v[24:27], v1, s[16:19], s28 offen")
    for sp in range(4):
        k(f"buffer_load_dwordx4 {v(8+4*sp,4)}, v1, s[8:11], s28 offen")
        if sp < 3: k(f"s_add_u32 s28, s28, {SZ_X}")
    k("buffer_load_dwordx4 v[28:31], v3, s[12:15], s32 offen")
    k("buffer_load_dwordx4 v[32:35], v3, s[12:15], s32 offen offset:16")
    k("s_waitcnt vmcnt(0)")
    for i in range(4):
        k(f"v_lshlrev_b32 v36, 16, v{8+i}")
        k(f"v_and_b32 v37, 0xffff0000, v{8+i}")
        for sp in range(1, 4):
            k(f"v_lshlrev_b32 v38, 16, v{8+4*sp+i}")
            k(f"v_and_b32 v39, 0xffff0000, v{8+4*sp+i}")
            k(f"v_add_f32 v36, v36, v38")
            k(f"v_add_f32 v37, v37, v39")
        k(f"v_lshlrev_b32 v38, 16, v{24+i}")
        k(f"v_and_b32 v39, 0xffff0000, v{24+i}")
        k(f"v_fmac_f32 v38, v36, v{28+2*i}")
        k(f"v_fmac_f32 v39, v37, v{28+2*i+1}")
        k(f"v_cvt_pk_bf16_f32 v{40+i}, v38, v39")
    k("buffer_store_dwordx4 v[40:43], v4, s[20:23], s31 offen")
    k.place(Lend)
    k("s_endpgm")
    return k

def kempty(n=256):
    k = Kern('k9_empty_kernel', n, 256, 0, vgpr=8)
    k("s_endpgm")
    return k

if __name__ == '__main__':
    ref = open(f'cdna_kernels/{NAME}.s.ref').read().split('\n')
    hdr = '\n'.join(l for l in ref[:13])
    ks = [k0(), k1(), k2(), k3(), k4(), k5(), k6()]
    import os
    la = list(ks)
    if os.environ.get('EMPTY'):
        e = kempty(); ks.append(e); la = la + [e]*int(os.environ['EMPTY'])
    txt = build(ks, hdr, la)
    out = sys.argv[1] if len(sys.argv) > 1 else f'cdna_kernels/{NAME}.s'
    open(out, 'w').write(txt)
    for x in ks: print(x.name, len(x.L), 'lines', x.nops, 'nops')
```

```python
import sys, struct
from asmlib import *

NAME = 'adaLN_cond__spectral_gfnet__glu_gated_bilinear__prompt'
KA_X, KA_WR, KA_WI, KA_BX, KA_WG, KA_WU, KA_WD, KA_C, KA_WM, KA_OUT, KA_DBG, KA_WS = [8*i for i in range(12)]
WS_MOD = 0;            SZ_MOD = 0x8000
WS_WT  = 0x100000;     SZ_WT = 320*8192
WS_T1  = 0x400000;     SZ_T = 320*8192
WS_T2  = 0x700000
WS_X1  = 0xA00000;     SZ_X = 2048*576*2
WS_H2  = 0xD00000
WS_P   = 0x1000000;    SZ_P = 2048*4608*2
WS_PART= 0x2400000;    SZ_PART = 4*2048*576*2

WS_DBG = 0x4000000
import os
STAMP = os.environ.get('STAMP', '')
class Stamps:
    def __init__(self, k, name, base=44, maxn=28):
        self.k = k; self.on = (STAMP == name); self.n = 0; self.base = base; self.maxn = maxn
        if self.on: k.sgpr = 102
    def __call__(self):
        if self.on and self.n < self.maxn:
            self.k(f"s_memtime s[{self.base+2*self.n}:{self.base+2*self.n+1}]"); self.n += 1
    def real(self):
        if self.on and self.n < self.maxn:
            self.k(f"s_memrealtime s[{self.base+2*self.n}:{self.base+2*self.n+1}]"); self.n += 1
    def flush(self, wsreg=4, wid=3, tv=0):
        if not self.on: return
        k = self.k
        k("s_waitcnt vmcnt(0) lgkmcnt(0)")
        self(); self.real()
        k("s_waitcnt lgkmcnt(0)")
        k.srd(8, wsreg, WS_DBG, 1 << 22)
        k("s_lshl_b32 s12, s2, 4")
        k(f"s_add_u32 s12, s12, s{wid}")
        k("s_lshl_b32 s12, s12, 7")
        k(f"v_mov_b32 v{tv+1}, 0")
        for i in range(self.n):
            k(f"v_mov_b32 v{tv}, s{self.base+2*i}")
            k(f"buffer_store_dword v{tv}, v{tv+1}, s[8:11], s12 offen offset:{4*i}")

E = os.environ.get
K4MAP = int(E('K4MAP', 1)); K4PRE = int(E('K4PRE', 5)); K4HLA = int(E('K4HLA', 7))
K4SYNC = eval(E('K4SYNC', '[0,1,2,3,4,6,8,10,12,14,16,18,21,24]'))
K5PRE = int(E('K5PRE', 4)); K5SYNC = eval(E('K5SYNC', '[0,1,2,3,4,6,8,10,12,14,16,18,20,22,24,26,28,30,32,34]'))
K5SLOTS = eval(E('K5SLOTS', '(0,1,2,4,5,6,7)'))
K4PFAT = int(E('K4PFAT', 150))
PST = E('PST', 'sc0 sc1')
def f2u(x): return struct.unpack('<I', struct.pack('<f', x))[0]

def dpp_allreduce16(k, r, t):
    for sh in (8, 4, 2, 1):
        k(f"v_add_f32_dpp {v(r)}, {v(r)}, {v(r)} row_ror:{sh} row_mask:0xf bank_mask:0xf")

def rnd_bf16(k, r):
    k(f"v_cvt_pk_bf16_f32 {v(r)}, {v(r)}, {v(r)}")
    k(f"v_lshlrev_b32 {v(r)}, 16, {v(r)}")

ST1 = E('ST1', '')
WT_ST = E('WT_ST', '')
PF = int(E('PF', 1))
MOD1, MOD3, MOD6 = 0, 4096, 16384
ALL = "s_mov_b64 exec, -1"
def execm(k, lo, hi):
    k(f"s_mov_b32 exec_lo, {lo:#x}"); k(f"s_mov_b32 exec_hi, {hi:#x}")

def prefetch_gu(k, base, cnt, nwg, sd, pg, vtmp, lane64):
    if not PF: return 0
    k("s_bitcmp1_b32 s3, 0")
    k(f"s_cselect_b32 s{sd}, s{pg+2}, s{pg}")
    k(f"s_cselect_b32 s{sd+1}, s{pg+3}, s{pg+1}")
    k(f"s_cmp_lt_u32 s3, {2*cnt}")
    k(f"s_cselect_b32 s{sd+2}, {576*4608*2:#x}, 0")
    k(f"s_mov_b32 s{sd+3}, 0x20000")
    k(f"s_lshr_b32 s{pg}, s3, 1")
    k(f"s_mul_i32 s{pg}, s{pg}, {nwg}")
    k(f"s_add_u32 s{pg}, s{pg}, s2")
    k(f"s_add_u32 s{pg}, s{pg}, {base}")
    k(f"s_lshl_b32 s{pg}, s{pg}, 12")
    k(f"v_add_u32 v{vtmp}, s{pg}, v{lane64}")
    k(f"buffer_load_dword v{vtmp}, v{vtmp}, s[{sd}:{sd+3}], 0 offen")
    return 1

def k0():
    NMOD, NWT = 108, 160
    k = Kern('k0_prep_kernel', NMOD+NWT, 256, 2048, vgpr=72)
    Lwt, Lend = k.label('wt'), k.label('end')
    k(f"s_load_dwordx2 s[4:5], s[0:1], {KA_WS}")
    k(f"s_load_dwordx4 s[12:15], s[0:1], {KA_C}")
    k(f"s_load_dwordx2 s[6:7], s[0:1], {KA_X}")
    k(f"s_load_dwordx4 s[8:11], s[0:1], {KA_WR}")
    k(f"v_lshrrev_b32 v1, 6, v0")
    k(f"v_readfirstlane_b32 s3, v1")
    k(f"s_cmp_ge_u32 s2, {NMOD+NWT}")
    k(f"s_cbranch_scc1 {Lend}")
    k(f"s_cmp_ge_u32 s2, {NMOD}")
    k(f"s_cbranch_scc1 {Lwt}")
    k("v_and_b32 v1, 3, v0")
    k("v_lshrrev_b32 v2, 2, v0")
    k("v_mul_u32_u24 v3, 6912, v2")
    k("v_lshl_add_u32 v3, v1, 4, v3")
    k("v_lshlrev_b32 v4, 1, v2")
    k("s_lshl_b32 s28, s2, 6")
    k(f"s_waitcnt lgkmcnt(0)")
    k.srd(16, 14, 0, 576*3456*2)
    k.srd(20, 12, 0, 1152)
    for i in range(9):
        k(f"buffer_load_dwordx4 {v(8+4*i,4)}, v3, s[16:19], s28 offen")
        if i < 8: k(f"s_add_u32 s28, s28, {64*6912}")
    for i in range(9):
        k(f"buffer_load_ushort v{48+i}, v4, s[20:23], 0 offen offset:{128*i}")
    k.srd(24, 4, WS_MOD, SZ_MOD)
    k("s_mul_i32 s29, s2, 3641")
    k("s_lshr_b32 s29, s29, 16")
    k("s_mul_i32 s30, s29, 18")
    k("s_sub_u32 s30, s2, s30")
    k("s_lshl_b32 s30, s30, 5")
    k("v_and_b32 v68, 31, v0")
    k("v_add_u32 v68, s30, v68")
    k("s_cmp_lt_u32 s29, 2")
    k("s_cselect_b32 s31, 3, 4")
    k("s_lshl_b32 s32, s29, 2")
    k(f"s_lshr_b32 s32, 0x48004, s32")
    k("s_and_b32 s32, s32, 15")
    k("s_cmp_lt_u32 s29, 2")
    k(f"s_cselect_b32 s33, {MOD1}, {MOD3}")
    k("s_add_u32 s32, s32, s33")
    k("v_lshrrev_b32 v69, 1, v68")
    k("v_lshlrev_b32 v69, s31, v69")
    k("v_and_b32 v70, 1, v68")
    k("v_lshl_add_u32 v69, v70, 1, v69")
    k("v_lshlrev_b32 v68, 2, v68")
    k("s_cmp_eq_u32 s29, 1")
    k("s_cselect_b32 s30, 1.0, 0")
    k("s_cmp_eq_u32 s29, 4")
    k("s_cselect_b32 s30, 1.0, s30")
    for j in range(8): k(f"v_mov_b32 v{60+j}, 0")
    k("s_waitcnt vmcnt(0)")
    for i in range(9): k(f"v_lshlrev_b32 v{48+i}, 16, v{48+i}")
    T = (5, 6, 7, 57, 58, 59, 44, 45, 46)
    for i in range(9): k(f"v_mul_f32 v{T[i]}, {f2u(-1.4426950408889634):#x}, v{48+i}")
    for i in range(9): k(f"v_exp_f32 v{T[i]}, v{T[i]}")
    for i in range(9): k(f"v_add_f32 v{T[i]}, 1.0, v{T[i]}")
    for i in range(9): k(f"v_rcp_f32 v{T[i]}, v{T[i]}")
    for i in range(9): k(f"v_mul_f32 v{48+i}, v{48+i}, v{T[i]}")
    for i in range(9): k(f"v_cvt_pk_bf16_f32 v{48+i}, v{48+i}, v{48+i}")
    for i in range(9): k(f"v_lshlrev_b32 v{48+i}, 16, v{48+i}")
    for i in range(9):
        for j in range(4):
            k(f"v_lshlrev_b32 v5, 16, v{8+4*i+j}")
            k(f"v_and_b32 v6, 0xffff0000, v{8+4*i+j}")
            k(f"v_fmac_f32 v{60+2*j}, v5, v{48+i}")
            k(f"v_fmac_f32 v{60+2*j+1}, v6, v{48+i}")
    for sh in (4, 8):
        for j in range(8):
            k(f"v_add_f32_dpp v{60+j}, v{60+j}, v{60+j} row_ror:{sh} row_mask:0xf bank_mask:0xf")
    k("v_lshrrev_b32 v5, 4, v0")
    k("v_lshlrev_b32 v5, 7, v5")
    k("v_lshl_add_u32 v5, v1, 5, v5")
    k("ds_write_b128 v5, v[60:63]")
    k("ds_write_b128 v5, v[64:67] offset:16")
    k("s_waitcnt lgkmcnt(0)")
    k("s_barrier")
    k("s_cmp_lg_u32 s3, 0")
    k(f"s_cbranch_scc1 {Lend}")
    k("v_and_b32 v5, 31, v0")
    k("v_lshlrev_b32 v5, 2, v5")
    k("v_add_u32 v6, 1024, v5")
    for i in range(8):
        k(f"ds_read2_b32 {v(8+2*i,2)}, v5 offset0:{64*i} offset1:{64*i+32}" if 64*i+32 < 256 else f"ds_read2_b32 {v(8+2*i,2)}, v6 offset0:{64*i-256} offset1:{64*i+32-256}")
    k("s_waitcnt lgkmcnt(0)")
    for st in (8, 4, 2, 1):
        for i in range(st): k(f"v_add_f32 v{8+i}, v{8+i}, v{8+i+st}")
    rnd_bf16(k, 8)
    k("v_add_f32 v8, s30, v8")
    k("v_cvt_pk_bf16_f32 v9, v8, v8")
    execm(k, 0xffffffff, 0)
    Lg = k.label('gb')
    k("s_cmp_eq_u32 s29, 5")
    k(f"s_cbranch_scc1 {Lg}")
    k("buffer_store_short v9, v69, s[24:27], s32 offen")
    k("s_endpgm")
    k.place(Lg)
    k(f"s_movk_i32 s32, {MOD6}")
    k("buffer_store_dword v8, v68, s[24:27], s32 offen")
    k("s_endpgm")
    k.place(Lwt)
    k(f"s_sub_u32 s28, s2, {NMOD}")
    k("s_and_b32 s29, s28, 3")
    k("s_bfe_u32 s30, s28, 0x30002")
    k("s_lshr_b32 s31, s28, 5")
    k("v_and_b32 v1, 63, v0")
    k("v_lshlrev_b32 v60, 6, v1")
    k("s_lshl_b32 s32, s31, 6")
    k("v_add_u32 v1, s32, v1")
    k("v_min_u32 v2, 288, v1")
    k("v_mul_u32_u24 v4, 3641, v2")
    k("v_lshrrev_b32 v4, 16, v4")
    k("v_mul_u32_u24 v5, 18, v4")
    k("v_sub_u32 v5, v2, v5")
    k("v_lshl_add_u32 v4, v5, 5, v4")
    k(f"v_sub_u32 v6, {18*32+31}, v4")
    k("v_cmp_lt_u32 vcc, 9, v5")
    k("v_cndmask_b32 v3, v4, v6, vcc")
    k("v_cndmask_b32 v6, 1, -1, vcc")
    k("v_cndmask_b32 v7, 1.0, -1.0, vcc")
    k("v_mov_b32 v5, 1.0")
    k("v_and_b32 v4, 0xffef, v4")
    k("v_cmp_eq_u32 vcc, 0, v4")
    k("v_cndmask_b32 v5, v5, 0.5, vcc")
    k("v_cndmask_b32 v7, v7, 0.5, vcc")
    k("v_lshlrev_b32 v2, 1, v2")
    k("v_lshlrev_b32 v3, 13, v3")
    k("v_cmp_lt_u32 vcc, 288, v1")
    k("v_cndmask_b32 v3, v3, -1, vcc")
    k("v_and_b32 v3, 0x7ffffff0, v3")
    k("s_lshl_b32 s33, s29, 4")
    k("s_lshl_b32 s34, s3, 2")
    k("s_add_u32 s33, s33, s34")
    k("s_lshl_b32 s34, s30, 8")
    k("s_add_u32 s33, s33, s34")
    for r in range(4):
        for kk in range(4):
            a_ = 40 + kk*4 + r
            k(f"s_add_u32 s35, s33, {64*r+kk}")
            k(f"v_mul_i32_i24 v{a_}, s35, v6")
            k(f"v_and_b32 v{a_}, 2047, v{a_}")
            k(f"v_mul_u32_u24 v{a_}, 578, v{a_}")
            k(f"v_add_u32 v{a_}, v{a_}, v2")
    k(f"s_waitcnt lgkmcnt(0)")
    k.srd(16, 8, 0, 2048*578)
    k.srd(20, 10, 0, 2048*578)
    for i in range(16):
        k(f"buffer_load_ushort v{8+i}, v{40+i}, s[16:19], 0 offen")
        k(f"buffer_load_ushort v{24+i}, v{40+i}, s[20:23], 0 offen")
    if PF:
        k.srd(12, 6, 0, SZ_X)
        k("s_lshl_b32 s36, s28, 2")
        k("s_add_u32 s36, s36, s3")
        k("s_lshl_b32 s36, s36, 12")
        k("v_add_u32 v60, s36, v60")
        k("buffer_load_dword v60, v60, s[12:15], 0 offen")
    k.srd(24, 4, WS_WT, SZ_WT)
    k("s_lshl_b32 s34, s29, 11")
    k("s_lshl_b32 s35, s30, 8")
    k("s_add_u32 s34, s34, s35")
    k("s_lshl_b32 s35, s3, 6")
    k("s_add_u32 s34, s34, s35")
    for kk in range(4):
        k(f"s_waitcnt vmcnt({24-8*kk+kk+PF})")
        for i in range(4*kk, 4*kk+4):
            k(f"v_lshlrev_b32 v{8+i}, 16, v{8+i}")
            k(f"v_lshlrev_b32 v{24+i}, 16, v{24+i}")
            k(f"v_mul_f32 v{8+i}, v{8+i}, v5")
            k(f"v_mul_f32 v{24+i}, v{24+i}, v7")
            k(f"v_cvt_pk_bf16_f32 v{8+i}, v{8+i}, v{24+i}")
        k(f"buffer_store_dwordx4 {v(8+4*kk,4)}, v3, s[24:27], s34 offen offset:{16*kk} {WT_ST}")
    k.place(Lend)
    k("s_endpgm")
    return k

def red64(k, r, sd):
    for sh in (8, 4, 2, 1):
        k(f"v_add_f32_dpp v{r}, v{r}, v{r} row_ror:{sh} row_mask:0xf bank_mask:0xf")
    k(f"v_add_f32_dpp v{r}, v{r}, v{r} row_bcast:15 row_mask:0xa bank_mask:0xf")
    k(f"v_add_f32_dpp v{r}, v{r}, v{r} row_bcast:31 row_mask:0xc bank_mask:0xf")
    k(f"v_readlane_b32 s{sd}, v{r}, 63")

def ln_row(k, X, mean, rstd, t, sd, fill):
    def F(n):
        for _ in range(n):
            if fill: k(fill.pop(0))
    k(f"v_add_f32 v{mean}, v{X}, v{X+1}")
    k(f"v_add_f32 v{t}, v{X+2}, v{X+3}")
    k(f"v_add_f32 v{rstd}, v{X+4}, v{X+5}")
    k(f"v_add_f32 v{mean}, v{mean}, v{X+6}")
    k(f"v_add_f32 v{t}, v{t}, v{X+7}")
    k(f"v_add_f32 v{rstd}, v{rstd}, v{X+8}")
    k(f"v_add_f32 v{mean}, v{mean}, v{X+9}")
    k(f"v_add3_f32_x" if False else f"v_add_f32 v{t}, v{t}, v{rstd}")
    k(f"v_add_f32 v{mean}, v{mean}, v{t}")
    def red(r):
        F(2)
        for sh in (8, 4, 2, 1):
            k(f"v_add_f32_dpp v{r}, v{r}, v{r} row_ror:{sh} row_mask:0xf bank_mask:0xf"); F(2)
        k(f"v_add_f32_dpp v{r}, v{r}, v{r} row_bcast:15 row_mask:0xa bank_mask:0xf"); F(2)
        k(f"v_add_f32_dpp v{r}, v{r}, v{r} row_bcast:31 row_mask:0xc bank_mask:0xf"); F(1)
        k(f"v_readlane_b32 s{sd}, v{r}, 63"); F(2)
        k(f"v_mov_b32 v{r}, {f2u(1.0/576):#x}")
        k(f"v_mul_f32 v{r}, s{sd}, v{r}")
    red(mean)
    for i in range(8): k(f"v_sub_f32 v{X+i}, v{X+i}, v{mean}")
    k("s_mov_b32 exec_hi, 0")
    for i in (8, 9): k(f"v_sub_f32 v{X+i}, v{X+i}, v{mean}")
    k("s_mov_b32 exec_hi, -1")
    k(f"v_mul_f32 v{rstd}, v{X}, v{X}")
    k(f"v_mul_f32 v{t}, v{X+1}, v{X+1}")
    for i in range(2, 10, 2):
        k(f"v_fmac_f32 v{rstd}, v{X+i}, v{X+i}")
        k(f"v_fmac_f32 v{t}, v{X+i+1}, v{X+i+1}")
    k(f"v_add_f32 v{rstd}, v{rstd}, v{t}")
    k(f"v_cvt_pk_bf16_f32 v{t}, v{mean}, v{mean}")
    k(f"v_lshlrev_b32 v{t}, 16, v{t}")
    k(f"v_sub_f32 v{mean}, v{mean}, v{t}")
    red(rstd)
    rnd_bf16(k, rstd)
    k(f"v_add_f32 v{rstd}, {f2u(1e-5):#x}, v{rstd}")
    rnd_bf16(k, rstd)
    k(f"v_sqrt_f32 v{rstd}, v{rstd}")
    rnd_bf16(k, rstd)
    k(f"v_rcp_f32 v{rstd}, v{rstd}")
    F(99)
    k(f"v_mul_f32 v{mean}, v{mean}, v{rstd}")
    for i in range(10): k(f"v_fma_f32 v{X+i}, v{X+i}, v{rstd}, v{mean}")

def mf(k, acc, A, B, C):
    k(f"v_mfma_f32_16x16x32_bf16 {v(acc,4)}, {v(A,4)}, {v(B,4)}, {'0' if C is None else v(C,4)}")

def sincos(out, ang, c, s_):
    out.append(f"v_cos_f32 v{c}, v{ang}"); out.append(f"v_sin_f32 v{s_}, v{ang}")

KS = 1040
def k1():
    k = Kern('k1_rdft_kernel', 256, 512, 10*KS, vgpr=112)
    Lend = k.label('end')
    T_ = Stamps(k, 'k1'); T_.real(); T_()
    k(f"s_load_dwordx2 s[6:7], s[0:1], {KA_X}")
    k(f"s_load_dwordx2 s[4:5], s[0:1], {KA_WS}")
    k(f"s_load_dwordx4 s[24:27], s[0:1], {KA_WG}")
    k("v_lshrrev_b32 v1, 6, v0")
    k("v_readfirstlane_b32 s3, v1")
    k("s_cmp_ge_u32 s2, 256")
    k(f"s_cbranch_scc1 {Lend}")
    XR, MR, X, B1, TW, A20, A21, TMP, DA, AC, D2, EE, OU = 8, 14, 24, 36, 44, 60, 66, 76, 88, 96, 8, 24, 96
    k("s_and_b32 s28, s2, 15")
    k("s_lshl_b32 s28, s28, 1")
    k("s_bfe_u32 s29, s2, 0x10004")
    k("s_add_u32 s28, s28, s29")
    k("s_lshr_b32 s29, s2, 5")
    k("s_lshl_b32 s30, s29, 3")
    k("s_add_u32 s30, s30, s3")
    k("s_lshl_b32 s30, s30, 5")
    k("s_add_u32 s30, s30, s28")
    k("s_mul_i32 s30, s30, 1152")
    k("v_and_b32 v1, 63, v0")
    k("v_and_b32 v2, 15, v0")
    k("v_bfe_u32 v3, v0, 4, 2")
    k("v_lshlrev_b32 v4, 2, v1")
    k("v_lshlrev_b32 v5, 3, v1")
    k(f"v_mov_b32 v{XR+4}, 0"); k(f"v_mov_b32 v{MR+8}, 0"); k(f"v_mov_b32 v{MR+9}, 0")
    G = []
    G.append("v_cvt_f32_u32 v6, v2"); G.append("v_cvt_f32_u32 v7, v3")
    G.append(f"v_mul_f32 v{TMP+10}, {f2u(1.0/18):#x}, v6")
    for jj in range(5):
        G.append(f"v_add_f32 v{TMP+11}, {f2u(4.0*jj):#x}, v7")
        G.append(f"v_mul_f32 v{TMP+11}, v{TMP+11}, v{TMP+10}")
        sincos(G, TMP+11, TMP+jj, TMP+5+jj)
    G += [f"v_cvt_pk_bf16_f32 v{B1}, v{TMP}, v{TMP+1}", f"v_cvt_pk_bf16_f32 v{B1+1}, v{TMP+2}, v{TMP+3}", f"v_cvt_pk_bf16_f32 v{B1+2}, v{TMP+4}, 0", f"v_mov_b32 v{B1+3}, 0",
          f"v_cvt_pk_bf16_f32 v{B1+4}, -v{TMP+5}, -v{TMP+6}", f"v_cvt_pk_bf16_f32 v{B1+5}, -v{TMP+7}, -v{TMP+8}", f"v_cvt_pk_bf16_f32 v{B1+6}, -v{TMP+9}, 0", f"v_mov_b32 v{B1+7}, 0",
          f"v_mov_b32 v{DA+3}, 0", f"v_mov_b32 v{DA+7}, 0"]
    G.append(f"v_mul_f32 v7, 8.0, v7".replace('8.0', f"{f2u(8.0):#x}"))
    for t in range(2):
        for r in range(4):
            G.append(f"v_add_f32 v{TMP+11}, {f2u(2.0*r+t):#x}, v7")
            G.append(f"v_mul_f32 v{TMP+11}, v{TMP+11}, v6")
            G.append(f"v_mul_f32 v{TMP+10}, {f2u(1.0/576):#x}, v{TMP+11}")
            G.append(f"v_mul_f32 v{TMP+11}, {f2u(1.0/32):#x}, v{TMP+11}")
            sincos(G, TMP+10, TW+(4*t+r)*2, TW+(4*t+r)*2+1)
            sincos(G, TMP+11, TMP+r, TMP+4+r)
        d = A20 if t == 0 else A21
        G += [f"v_cvt_pk_bf16_f32 v{d+2}, v{TMP}, v{TMP+1}", f"v_cvt_pk_bf16_f32 v{d+3}, v{TMP+2}, v{TMP+3}",
              f"v_cvt_pk_bf16_f32 v{d+4}, v{TMP+4}, v{TMP+5}", f"v_cvt_pk_bf16_f32 v{d+5}, v{TMP+6}, v{TMP+7}",
              f"v_cvt_pk_bf16_f32 v{d}, -v{TMP+4}, -v{TMP+5}", f"v_cvt_pk_bf16_f32 v{d+1}, -v{TMP+6}, -v{TMP+7}"]
        if t: G += [f"v_cvt_pk_bf16_f32 v{d+6}, -v{TMP}, -v{TMP+1}", f"v_cvt_pk_bf16_f32 v{d+7}, -v{TMP+2}, -v{TMP+3}",
                    f"v_mov_b32 v{d+8}, v{d}", f"v_mov_b32 v{d+9}, v{d+1}"]
    NA = int(E('K1A', 70))
    for x in G[:NA]: k(x)
    k("s_waitcnt lgkmcnt(0)")
    T_()
    k.srd(8, 6, 0, SZ_X)
    k.srd(12, 4, WS_MOD, SZ_MOD)
    for j in range(4):
        k(f"buffer_load_dword v{XR+j}, v4, s[8:11], s30 offen offset:{256*j}")
    k("s_mov_b32 exec_hi, 0")
    k(f"buffer_load_dword v{XR+4}, v4, s[8:11], s30 offen offset:1024")
    k(f"buffer_load_dwordx2 {v(MR+8,2)}, v5, s[12:15], 0 offen offset:{MOD1+2048}")
    k("s_mov_b32 exec_hi, -1")
    for j in range(4):
        k(f"buffer_load_dwordx2 {v(MR+2*j,2)}, v5, s[12:15], 0 offen offset:{MOD1+512*j}")
    k("v_lshlrev_b32 v5, 6, v1")
    pf = prefetch_gu(k, 0, 2, 256, 16, 24, 5, 5)
    for x in G[NA:]: k(x)
    k.srd(20, 4, WS_T1, SZ_T)
    k(f"v_mul_u32_u24 v2, {KS}, v2")
    k("v_lshl_add_u32 v2, v3, 7, v2")
    k("s_lshl_b32 s31, s3, 2")
    k("v_add_u32 v2, s31, v2")
    k("v_lshlrev_b32 v4, 4, v1")
    k(f"s_mul_i32 s31, s3, {KS}")
    k("v_add_u32 v3, s31, v4")
    k("v_lshrrev_b32 v6, 1, v1")
    k("v_lshlrev_b32 v6, 13, v6")
    k("v_and_b32 v7, 16, v4")
    k("v_add_u32 v6, v6, v7")
    k("s_lshr_b32 s31, s28, 4"); k("s_lshl_b32 s31, s31, 12")
    k("s_and_b32 s32, s28, 15"); k("s_lshl_b32 s32, s32, 6"); k("s_add_u32 s31, s31, s32")
    k("s_lshr_b32 s32, s29, 1"); k("s_lshl_b32 s32, s32, 10"); k("s_add_u32 s31, s31, s32")
    k("s_and_b32 s32, s29, 1"); k("s_lshl_b32 s32, s32, 5"); k("s_add_u32 s31, s31, s32")
    k("s_add_u32 s32, s3, 1"); k("s_lshl_b32 s32, s32, 18"); k("s_add_u32 s32, s32, s31")
    T_()
    k(f"s_waitcnt vmcnt({5+pf})")
    T_()
    for j in range(5):
        k(f"v_lshlrev_b32 v{X+2*j}, 16, v{XR+j}")
        k(f"v_and_b32 v{X+2*j+1}, 0xffff0000, v{XR+j}")
    CA, SA = TMP, AC
    fill = [f"s_waitcnt vmcnt({pf})"]
    for j in range(5):
        fill += [f"v_lshlrev_b32 v{CA+2*j}, 16, v{MR+2*j}", f"v_and_b32 v{CA+2*j+1}, 0xffff0000, v{MR+2*j}",
                 f"v_lshlrev_b32 v{SA+2*j}, 16, v{MR+2*j+1}", f"v_and_b32 v{SA+2*j+1}, 0xffff0000, v{MR+2*j+1}"]
    ln_row(k, X, 34, 35, 7, 33, fill)
    for i in range(10): k(f"v_fma_f32 v{X+i}, v{X+i}, v{CA+i}, v{SA+i}")
    for t in range(2):
        k(f"v_cvt_pk_bf16_f32 v{DA+4*t}, v{X+t}, v{X+2+t}")
        k(f"v_cvt_pk_bf16_f32 v{DA+4*t+1}, v{X+4+t}, v{X+6+t}")
        k(f"v_cvt_pk_bf16_f32 v{DA+4*t+2}, v{X+8+t}, 0")
    T_()
    for t in range(2):
        mf(k, AC+8*t, DA+4*t, B1, None); mf(k, AC+8*t+4, DA+4*t, B1+4, None)
    for t in range(2):
        for r in range(4):
            re, im, c_, s_ = AC+8*t+r, AC+8*t+4+r, TW+(t*4+r)*2, TW+(t*4+r)*2+1
            k(f"v_mul_f32 v{TMP+r}, v{re}, v{c_}")
            k(f"v_mul_f32 v{TMP+4+r}, v{im}, v{c_}")
            k(f"v_fmac_f32 v{TMP+r}, v{im}, v{s_}")
            k(f"v_fma_f32 v{TMP+4+r}, -v{re}, v{s_}, v{TMP+4+r}")
        for i in range(4):
            k(f"v_cvt_pk_bf16_f32 v{D2+4*t+i}, v{TMP+2*i}, v{TMP+2*i+1}")
        if t == 0:
            mf(k, EE, A20+2, D2, None); mf(k, EE+4, A20, D2, None)
    mf(k, OU, A21+2, D2+4, EE); mf(k, OU+4, A21, D2+4, EE+4)
    mf(k, OU+8, A21+6, D2+4, EE); mf(k, OU+12, A21+4, D2+4, EE+4)
    execm(k, 0x03ff03ff, 0x03ff03ff)
    for u in range(2):
        for r in range(4):
            k(f"v_cvt_pk_bf16_f32 v{TMP+4*u+r}, v{OU+8*u+r}, v{OU+8*u+4+r}")
        for r in (0, 2):
            k(f"ds_write2_b32 v2, v{TMP+4*u+r}, v{TMP+4*u+r+1} offset0:{128*u+8*r} offset1:{128*u+8*r+8}")
    k(ALL)
    k("s_waitcnt lgkmcnt(0)")
    T_()
    k("s_barrier")
    T_()
    k(f"ds_read_b128 v[8:11], v3 offset:{KS}")
    L2 = k.label('x')
    k("s_cmp_ge_u32 s3, 2")
    k(f"s_cbranch_scc1 {L2}")
    k(f"s_mul_i32 s33, s3, {9*KS}")
    k("v_add_u32 v4, s33, v4")
    k("ds_read_b128 v[12:15], v4")
    k(f"s_mul_i32 s33, s3, {9<<18}")
    k("s_add_u32 s31, s31, s33")
    k("s_cmp_eq_u32 s3, 0")
    k("s_cselect_b32 exec_hi, 3, 0")
    k("s_waitcnt lgkmcnt(0)")
    k(f"buffer_store_dwordx4 v[12:15], v6, s[20:23], s31 offen {ST1}")
    k("s_mov_b32 exec_hi, -1")
    k.place(L2)
    k("s_waitcnt lgkmcnt(0)")
    k(f"buffer_store_dwordx4 v[8:11], v6, s[20:23], s32 offen {ST1}")
    T_(); T_.flush(tv=1)
    k.place(Lend)
    k("s_endpgm")
    return k

def k2():
    k = Kern('k2_sfft_kernel', 289, 256, 8192, vgpr=172)
    Lend = k.label('end')
    T = Stamps(k, 'k2'); T.real(); T()
    k(f"s_load_dwordx2 s[4:5], s[0:1], {KA_WS}")
    k(f"s_load_dwordx4 s[24:27], s[0:1], {KA_WG}")
    k("v_lshrrev_b32 v1, 6, v0")
    k("v_readfirstlane_b32 s3, v1")
    k("s_cmp_ge_u32 s2, 289")
    k(f"s_cbranch_scc1 {Lend}")
    k("s_cmp_lt_u32 s2, 17")
    k("s_cselect_b32 s35, 0, 15")
    k("s_add_u32 s35, s35, s2")
    k("s_lshl_b32 s28, s35, 13")
    k("s_lshl_b32 s30, s3, 11")
    k("s_add_u32 s29, s28, s30")
    k("s_add_u32 s31, s28, 4096")
    k("v_and_b32 v1, 15, v0")
    k("v_bfe_u32 v2, v0, 4, 2")
    k("v_lshlrev_b32 v3, 6, v1")
    k("v_lshl_add_u32 v3, v2, 4, v3")
    k("v_and_b32 v4, 63, v0")
    k("v_lshlrev_b32 v4, 4, v4")
    DIN, WW, F64, F32, TW1, TW2, ACC, TMP = 8, 40, 48, 80, 104, 120, 136, 152
    MN, M1, M2 = 164, 165, 166
    G = []
    G += ["s_lshl_b32 s32, s3, 4", "v_add_u32 v5, s32, v1", "v_cvt_f32_u32 v5, v5", "v_lshlrev_b32 v6, 2, v2", "v_cvt_f32_u32 v6, v6", "v_cvt_f32_u32 v7, v1"]
    def ang4(step, base, c, s_, cs=1):
        for j in range(4):
            a_ = base
            if j:
                G.append(f"v_fmamk_f32 v{TMP+10}, v{step}, {f2u(float(j)):#x}, v{base}"); a_ = TMP+10
            sincos(G, a_, c+cs*j, s_+cs*j)
    G += [f"v_mul_f32 v{TMP+8}, {f2u(1.0/64):#x}, v5", f"v_mul_f32 v{TMP+9}, v{TMP+8}, v6"]
    ang4(TMP+8, TMP+9, TMP, TMP+4)
    G += [f"v_bfe_i32 v{MN}, v1, 0, 1", f"v_bfe_i32 v{M1}, v1, 1, 1", f"v_and_b32 v{MN}, 0x80008000, v{MN}", f"v_and_b32 v{M1}, 0x80008000, v{M1}",
          f"v_xor_b32 v{M2}, v{M1}, v{MN}", f"v_cmp_ne_u32 vcc, 0, v{MN}"]
    for j in range(4):
        G += [f"v_cvt_pk_bf16_f32 v{F64+j}, v{TMP+j}, v{TMP+4+j}", f"v_cvt_pk_bf16_f32 v{F64+4+j}, -v{TMP+4+j}, v{TMP+j}"]
    for j in range(4):
        G += [f"v_cndmask_b32 v{F64+8+j}, v{F64+j}, v{F64+4+j}, vcc", f"v_cndmask_b32 v{F64+12+j}, v{F64+4+j}, v{F64+j}, vcc"]
    for j in range(4):
        G += [f"v_xor_b32 v{F64+8+j}, v{F64+8+j}, v{M1}", f"v_xor_b32 v{F64+12+j}, v{F64+12+j}, v{M2}"]
    for j in range(16): G.append(f"v_xor_b32 v{F64+16+j}, v{F64+j}, v{MN}")
    G += [f"v_mul_f32 v{TMP+8}, {f2u(1.0/2048):#x}, v5", f"v_mul_f32 v{TMP+9}, v{TMP+8}, v6"]
    ang4(TMP+8, TMP+9, TW1, TW1+1, 2)
    G.append(f"v_fmamk_f32 v{TMP+9}, v{TMP+8}, {f2u(16.0):#x}, v{TMP+9}")
    ang4(TMP+8, TMP+9, TW1+8, TW1+9, 2)
    G += [f"v_mul_f32 v{TMP+8}, {f2u(1.0/32):#x}, v7", f"v_mul_f32 v{TMP+9}, v{TMP+8}, v6"]
    ang4(TMP+8, TMP+9, TMP, TMP+4)
    G += [f"v_cvt_pk_bf16_f32 v{F32+2}, v{TMP}, v{TMP+1}", f"v_cvt_pk_bf16_f32 v{F32+3}, v{TMP+2}, v{TMP+3}",
          f"v_cvt_pk_bf16_f32 v{F32+4}, v{TMP+4}, v{TMP+5}", f"v_cvt_pk_bf16_f32 v{F32+5}, v{TMP+6}, v{TMP+7}",
          f"v_cvt_pk_bf16_f32 v{F32}, -v{TMP+4}, -v{TMP+5}", f"v_cvt_pk_bf16_f32 v{F32+1}, -v{TMP+6}, -v{TMP+7}"]
    for j in range(6): G.append(f"v_xor_b32 v{F32+6+j}, v{F32+j}, v{MN}")
    for j in range(12): G.append(f"v_xor_b32 v{F32+12+j}, 0x80000000, v{F32+j}")
    G += ["v_cvt_f32_u32 v5, s32", "v_add_f32 v5, v5, v6"]
    for nt in range(2):
        if nt: G.append(f"v_add_f32 v7, {f2u(16.0):#x}, v7")
        G += [f"v_mul_f32 v{TMP+8}, {f2u(1.0/2048):#x}, v7", f"v_mul_f32 v{TMP+9}, v{TMP+8}, v5"]
        ang4(TMP+8, TMP+9, TW2+8*nt, TW2+8*nt+1, 2)
    NA = int(E('K2A', 80))
    for x in G[:NA]: k(x)
    k("s_waitcnt lgkmcnt(0)")
    T()
    k.srd(8, 4, WS_T1, SZ_T)
    for t in range(4):
        for mt in range(2):
            k(f"buffer_load_dwordx4 {v(DIN+16*mt+4*t,4)}, v3, s[8:11], s{28 if mt == 0 else 31} offen offset:{1024*t}")
    k.srd(12, 4, WS_WT, SZ_WT)
    for mt in range(2):
        k(f"buffer_load_dwordx4 {v(WW+4*mt,4)}, v4, s[12:15], s29 offen offset:{1024*mt}")
    k("v_lshlrev_b32 v167, 2, v4")
    pf = prefetch_gu(k, 1024, 1, 0, 20, 24, 167, 167)
    for x in G[NA:]: k(x)
    k.srd(16, 4, WS_T2, SZ_T)
    k("v_lshrrev_b32 v3, 2, v1")
    k("v_lshl_add_u32 v3, v3, 4, v2")
    k("v_mul_u32_u24 v3, 20480, v3")
    k("v_and_b32 v1, 3, v1")
    k("v_lshl_add_u32 v3, v1, 4, v3")
    k(f"s_mul_i32 s33, s3, {4*20480}")
    k("s_lshl_b32 s34, s35, 6")
    k("s_add_u32 s33, s33, s34")
    k(f"s_add_u32 s34, s33, {64*20480}")
    k("v_add_u32 v5, s30, v4")
    T()
    RE = lambda m: m+2
    IM = lambda m: m
    for t in range(4):
        k(f"s_waitcnt vmcnt({2+pf+6-2*t})")
        if t == 0: T()
        for mt in range(2):
            mf(k, ACC+8*mt, DIN+16*mt+4*t, F64+8*t, ACC+8*mt if t else None)
            mf(k, ACC+8*mt+4, DIN+16*mt+4*t, F64+8*t+4, ACC+8*mt+4 if t else None)
    def twiddle(TW, dst, inter):
        for tl in range(2):
            for r in range(4):
                re, im, c_, s_ = ACC+8*tl+r, ACC+8*tl+4+r, TW+(tl*4+r)*2, TW+(tl*4+r)*2+1
                k(f"v_mul_f32 v{TMP+r}, v{re}, v{c_}")
                k(f"v_mul_f32 v{TMP+4+r}, v{im}, v{c_}")
                k(f"v_fmac_f32 v{TMP+r}, v{im}, v{s_}")
                k(f"v_fma_f32 v{TMP+4+r}, -v{re}, v{s_}, v{TMP+4+r}")
            for i in range(4):
                if inter: k(f"v_cvt_pk_bf16_f32 v{dst+4*tl+i}, v{TMP+i}, v{TMP+4+i}")
                else: k(f"v_cvt_pk_bf16_f32 v{dst+4*tl+i}, v{TMP+2*i}, v{TMP+2*i+1}")
            if inter: k(f"ds_write_b128 v5, {v(dst+4*tl,4)} offset:{1024*tl}")
    WF = DIN + 16
    k(f"s_waitcnt vmcnt({pf})")
    D2 = DIN
    twiddle(TW1, D2, False)
    AC2 = TW1
    for mt in range(2):
        for mo in range(2):
            mf(k, ACC+8*mo, RE(F32+6*(2*mo+mt)), D2+4*mt, ACC+8*mo if mt else None)
            mf(k, ACC+8*mo+4, IM(F32+6*(2*mo+mt)), D2+4*mt, ACC+8*mo+4 if mt else None)
            for i in range(4*mt+2*mo, 4*mt+2*mo+2):
                k(f"v_lshlrev_b32 v{WF+2*i}, 16, v{WW+i}")
                k(f"v_and_b32 v{WF+2*i+1}, 0xffff0000, v{WW+i}")
    T()
    D3 = DIN+8
    for tl in range(2):
        for r in range(4):
            re, im, wr, wi = ACC+8*tl+r, ACC+8*tl+4+r, WF+2*(4*tl+r), WF+2*(4*tl+r)+1
            k(f"v_mul_f32 v{TMP+r}, v{re}, v{wr}")
            k(f"v_mul_f32 v{TMP+4+r}, v{im}, v{wr}")
            k(f"v_fma_f32 v{TMP+r}, -v{im}, v{wi}, v{TMP+r}")
            k(f"v_fma_f32 v{TMP+4+r}, -v{re}, v{wi}, -v{TMP+4+r}")
        for i in range(4):
            k(f"v_cvt_pk_bf16_f32 v{D3+4*tl+i}, v{TMP+2*i}, v{TMP+2*i+1}")
    for mt in range(2):
        for nt in range(2):
            mf(k, ACC+8*nt, D3+4*mt, RE(F32+6*(2*nt+mt)), ACC+8*nt if mt else None)
            mf(k, ACC+8*nt+4, D3+4*mt, IM(F32+6*(2*nt+mt)), ACC+8*nt+4 if mt else None)
    twiddle(TW2, DIN+16, True)
    k("s_waitcnt lgkmcnt(0)")
    T()
    k("s_barrier")
    T()
    for nt in range(2):
        for t in range(4):
            k(f"ds_read_b128 {v(DIN+16*nt+4*t,4)}, v4 offset:{2048*t+1024*nt}")
    for nt in range(2):
        for t in range(4):
            if t % 2 == 0: k(f"s_waitcnt lgkmcnt({6-4*nt-t})")
            mf(k, ACC+8*nt, F64+8*t, DIN+16*nt+4*t, ACC+8*nt if t else None)
            mf(k, ACC+8*nt+4, F64+8*t+4, DIN+16*nt+4*t, ACC+8*nt+4 if t else None)
    for nt in range(2):
        for r in range(4):
            k(f"v_cvt_pk_bf16_f32 v{TMP+4*nt+r}, v{ACC+8*nt+r}, -v{ACC+8*nt+4+r}")
        k(f"buffer_store_dwordx4 {v(TMP+4*nt,4)}, v3, s[16:19], s{33+nt} offen {PST}")
    T(); T.flush(tv=1)
    k.place(Lend)
    k("s_endpgm")
    return k

def k3():
    RS = 1168; XO = 10*KS; HO = XO + 8*RS
    k = Kern('k3_irdft_kernel', 256, 512, HO + 8*RS, vgpr=128)
    Lend = k.label('end')
    T_ = Stamps(k, 'k3'); T_.real(); T_()
    k(f"s_load_dwordx2 s[4:5], s[0:1], {KA_WS}")
    k(f"s_load_dwordx2 s[6:7], s[0:1], {KA_X}")
    k(f"s_load_dwordx4 s[24:27], s[0:1], {KA_WG}")
    k("v_lshrrev_b32 v1, 6, v0")
    k("v_readfirstlane_b32 s3, v1")
    k("s_cmp_ge_u32 s2, 256")
    k(f"s_cbranch_scc1 {Lend}")
    XR, MR, DT, TA, TW, TB, TMP, AC, X = 8, 14, 32, 40, 64, 80, 88, 100, 116
    k("s_lshr_b32 s28, s2, 4"); k("s_lshl_b32 s28, s28, 3"); k("s_and_b32 s29, s2, 7"); k("s_add_u32 s28, s28, s29")
    k("s_bfe_u32 s29, s2, 0x10003")
    k("s_and_b32 s30, s28, 15"); k("s_lshl_b32 s30, s30, 2"); k("s_and_b32 s31, s3, 3"); k("s_add_u32 s30, s30, s31"); k("s_lshl_b32 s30, s30, 4")
    k("s_lshr_b32 s31, s28, 4"); k("s_lshl_b32 s31, s31, 1"); k("s_add_u32 s30, s30, s31"); k("s_add_u32 s30, s30, s29"); k("s_lshl_b32 s30, s30, 1")
    k("s_lshr_b32 s31, s3, 2"); k("s_add_u32 s30, s30, s31")
    k("s_mul_i32 s30, s30, 1152")
    k("s_mul_i32 s31, s28, 20480"); k("s_lshl_b32 s32, s29, 5"); k("s_add_u32 s31, s31, s32")
    k("s_add_u32 s33, s3, 1"); k("s_lshl_b32 s32, s33, 11"); k("s_add_u32 s32, s32, s31")
    k(f"s_mul_i32 s33, s33, {KS}")
    k("s_mov_b32 m0, s33")
    k("v_and_b32 v1, 63, v0")
    k("v_and_b32 v2, 15, v0")
    k("v_bfe_u32 v3, v0, 4, 2")
    k("v_lshlrev_b32 v4, 2, v1")
    k("v_lshlrev_b32 v5, 4, v1")
    k("v_lshlrev_b32 v6, 5, v1")
    k("v_and_b32 v7, 16, v5")
    k("v_sub_u32 v126, v6, v7")
    for r in [XR+4, MR+12, MR+13, MR+14] + list(range(DT, DT+8)): k(f"v_mov_b32 v{r}, 0")
    G = []
    G += ["v_cvt_f32_u32 v6, v2", "v_lshlrev_b32 v7, 2, v3", "v_cvt_f32_u32 v7, v7", "v_add_f32 v6, v6, v6", f"s_mov_b32 s40, {f2u(2.0/(576*2048)):#x}"]
    for t in range(2):
        if t: G.append("v_add_f32 v6, 1.0, v6")
        for r in range(4):
            G.append(f"v_add_f32 v{TMP+11}, {f2u(float(r)):#x}, v7")
            G.append(f"v_mul_f32 v{TMP+11}, v{TMP+11}, v6")
            G.append(f"v_mul_f32 v{TMP+10}, {f2u(1.0/576):#x}, v{TMP+11}")
            G.append(f"v_mul_f32 v{TMP+11}, {f2u(1.0/32):#x}, v{TMP+11}")
            sincos(G, TMP+10, TW+(4*t+r)*2, TW+(4*t+r)*2+1)
            sincos(G, TMP+11, TMP+r, TMP+4+r)
        for r in range(4):
            G += [f"v_cvt_pk_bf16_f32 v{TA+8*t+r}, v{TMP+r}, -v{TMP+4+r}", f"v_cvt_pk_bf16_f32 v{TA+8*t+4+r}, v{TMP+4+r}, v{TMP+r}"]
    for r in range(8): G.append(f"v_xor_b32 v{TA+16+r}, 0x80008000, v{TA+8+r}")
    for r in range(16): G.append(f"v_mul_f32 v{TW+r}, s40, v{TW+r}")
    G += ["v_and_b32 v6, 3, v2", f"v_lshrrev_b32 v{TMP+11}, 2, v2", f"v_lshl_add_u32 v6, v6, 2, v{TMP+11}", "v_cvt_f32_u32 v6, v6"]
    for ta in range(2):
        if ta: G.append(f"v_add_f32 v6, {f2u(16.0):#x}, v6")
        G += [f"v_mul_f32 v{TMP+8}, {f2u(1.0/18):#x}, v6", f"v_mul_f32 v{TMP+9}, v{TMP+8}, v7"]
        for j in range(4):
            a_ = TMP+9
            if j:
                G.append(f"v_fmamk_f32 v{TMP+10}, v{TMP+8}, {f2u(float(j)):#x}, v{TMP+9}"); a_ = TMP+10
            sincos(G, a_, TMP+j, TMP+4+j)
        G += [f"v_cvt_pk_bf16_f32 v{TB+4*ta}, v{TMP}, v{TMP+1}", f"v_cvt_pk_bf16_f32 v{TB+4*ta+1}, v{TMP+2}, v{TMP+3}",
              f"v_cvt_pk_bf16_f32 v{TB+4*ta+2}, -v{TMP+4}, -v{TMP+5}", f"v_cvt_pk_bf16_f32 v{TB+4*ta+3}, -v{TMP+6}, -v{TMP+7}"]
    NA = int(E('K3A', 60))
    for x in G[:NA]: k(x)
    k("s_waitcnt lgkmcnt(0)")
    T_()
    k.srd(16, 4, WS_T2, SZ_T)
    k("buffer_load_dwordx4 v126, s[16:19], s32 offen lds")
    L1 = k.label('x')
    k("s_cmp_ge_u32 s3, 2")
    k(f"s_cbranch_scc1 {L1}")
    k(f"s_mul_i32 s33, s3, {9*KS}")
    k("s_mov_b32 m0, s33")
    k(f"s_mul_i32 s33, s3, {9*2048}")
    k("s_add_u32 s33, s33, s31")
    k("buffer_load_dwordx4 v126, s[16:19], s33 offen lds")
    k.place(L1)
    k.srd(8, 6, 0, SZ_X)
    k.srd(12, 4, WS_MOD + MOD3, 288*16)
    for j in range(4):
        k(f"buffer_load_dword v{XR+j}, v4, s[8:11], s30 offen offset:{256*j}")
    k("s_mov_b32 exec_hi, 0")
    k(f"buffer_load_dword v{XR+4}, v4, s[8:11], s30 offen offset:1024")
    k("s_movk_i32 s33, 4096")
    k(f"buffer_load_dwordx3 {v(MR+12,3)}, v5, s[12:15], s33 offen")
    k("s_mov_b32 exec_hi, -1")
    MRJ = [MR, MR+4, MR+8, 122, MR+12]
    for j in range(4):
        k(f"buffer_load_dwordx3 {v(MRJ[j],3)}, v5, s[12:15], 0 offen offset:{1024*j}")
    k("v_lshlrev_b32 v126, 6, v1")
    pf = prefetch_gu(k, 512, 2, 256, 16, 24, 126, 126)
    for x in G[NA:]: k(x)
    k.srd(20, 4, WS_X1, SZ_X)
    k.srd(24, 4, WS_H2, SZ_X)
    k(f"v_mul_u32_u24 v2, {KS}, v2")
    k("v_lshl_add_u32 v2, v3, 7, v2")
    k("s_lshl_b32 s33, s3, 2")
    k("v_add_u32 v2, s33, v2")
    k(f"s_mul_i32 s33, s3, {RS}")
    k("v_add_u32 v4, s33, v4")
    T_()
    k(f"s_waitcnt vmcnt({10+pf})")
    k("s_barrier")
    T_()
    execm(k, 0x03ff03ff, 0x03ff03ff)
    k(f"ds_read2_b32 {v(DT,2)}, v2 offset0:0 offset1:8")
    k(f"ds_read2_b32 {v(DT+2,2)}, v2 offset0:16 offset1:24")
    execm(k, 0x01fe01fe, 0x01fe01fe)
    k(f"ds_read2_b32 {v(DT+4,2)}, v2 offset0:128 offset1:136")
    k(f"ds_read2_b32 {v(DT+6,2)}, v2 offset0:144 offset1:152")
    k("s_mov_b64 exec, 1")
    k(f"ds_read_b32 v{DT+4}, v2 offset:512")
    k(ALL)
    k("v_and_b32 v5, 7, v0")
    k("v_lshrrev_b32 v6, 3, v0")
    k(f"v_mul_u32_u24 v3, {RS}, v5")
    k("v_lshlrev_b32 v5, 4, v5")
    k("v_lshl_add_u32 v1, v6, 4, v3")
    k("v_and_b32 v7, 3, v6")
    k("v_lshlrev_b32 v7, 3, v7")
    k("v_sub_u32 v3, v1, v7")
    k("v_lshl_add_u32 v127, v6, 9, v5")
    k("v_lshl_add_u32 v5, v6, 8, v5")
    k("s_lshr_b32 s34, s28, 1"); k("s_mul_i32 s34, s34, 36864"); k("s_and_b32 s35, s28, 1"); k("s_lshl_b32 s35, s35, 8"); k("s_add_u32 s34, s34, s35")
    k("s_lshl_b32 s36, s29, 7"); k("s_add_u32 s34, s34, s36")
    k("s_mul_i32 s35, s28, 18432"); k("s_add_u32 s35, s35, s36")
    k("s_waitcnt lgkmcnt(3)")
    for t in range(2):
        mf(k, AC+8*t, DT, TA+8*t, None); mf(k, AC+8*t+4, DT, TA+8*t+4, None)
    k("s_waitcnt lgkmcnt(0)")
    for t in range(2):
        mf(k, AC+8*t, DT+4, TA+16*t, AC+8*t); mf(k, AC+8*t+4, DT+4, TA+16*t+4, AC+8*t+4)
    k(f"s_waitcnt vmcnt({pf})")
    GA = TA
    for j in range(5):
        k(f"v_lshlrev_b32 v{X+2*j if j < 3 else 26+2*j-6+0}, 16, v{XR+j}") if False else None
    XF = [116, 117, 118, 119, 120, 121, 28, 29, 30, 31]
    Y = TA
    for t in range(2):
        for r in range(4):
            re, im, c_, s_ = AC+8*t+r, AC+8*t+4+r, TW+(t*4+r)*2, TW+(t*4+r)*2+1
            k(f"v_mul_f32 v{TMP+r}, v{re}, v{c_}")
            k(f"v_mul_f32 v{TMP+4+r}, v{im}, v{c_}")
            k(f"v_fma_f32 v{TMP+r}, -v{im}, v{s_}, v{TMP+r}")
            k(f"v_fmac_f32 v{TMP+4+r}, v{re}, v{s_}")
        for i in range(4):
            k(f"v_cvt_pk_bf16_f32 v{DT+4*t+i}, v{TMP+2*i}, v{TMP+2*i+1}")
        mf(k, Y+8*t, TB, DT+4*t, None); mf(k, Y+8*t+4, TB+4, DT+4*t, None)
    T_()
    X = TW; GA = TMP
    for j in range(5):
        k(f"v_lshlrev_b32 v{X+2*j}, 16, v{XR+j}")
        k(f"v_and_b32 v{X+2*j+1}, 0xffff0000, v{XR+j}")
        k(f"v_lshlrev_b32 v{GA+2*j}, 16, v{MRJ[j]}")
        k(f"v_and_b32 v{GA+2*j+1}, 0xffff0000, v{MRJ[j]}")
    for t in range(2):
        for j in range(5): k(f"v_fmac_f32 v{X+2*j+t}, v{GA+2*j+t}, v{Y+8*t+j}")
    for j in range(5): k(f"v_cvt_pk_bf16_f32 v{XR+j}, v{X+2*j}, v{X+2*j+1}")
    def rowwrite(R, off):
        k(f"ds_write2st64_b32 v4, v{R}, v{R+1} offset0:0 offset1:1")
        k(f"ds_write2st64_b32 v4, v{R+2}, v{R+3} offset0:2 offset1:3")
        k("s_mov_b32 exec_hi, 0")
        k(f"ds_write_b32 v4, v{R+4} offset:1024")
        k("s_mov_b32 exec_hi, -1")
    k(f"v_add_u32 v4, {XO}, v4")
    for j in range(5):
        k(f"v_lshlrev_b32 v{X+2*j}, 16, v{XR+j}")
        k(f"v_and_b32 v{X+2*j+1}, 0xffff0000, v{XR+j}")
    rowwrite(XR, XO)
    CB, SB = TMP, AC
    fill = []
    for j in range(5):
        fill += [f"v_lshlrev_b32 v{CB+2*j}, 16, v{MRJ[j]+1}", f"v_and_b32 v{CB+2*j+1}, 0xffff0000, v{MRJ[j]+1}",
                 f"v_lshlrev_b32 v{SB+2*j}, 16, v{MRJ[j]+2}", f"v_and_b32 v{SB+2*j+1}, 0xffff0000, v{MRJ[j]+2}"]
    fill.append(f"v_add_u32 v4, {8*RS}, v4")
    ln_row(k, X, 74, 75, 76, 33, fill)
    for i in range(10): k(f"v_fma_f32 v{X+i}, v{X+i}, v{CB+i}, v{SB+i}")
    for j in range(5): k(f"v_cvt_pk_bf16_f32 v{DT+j}, v{X+2*j}, v{X+2*j+1}")
    rowwrite(DT, HO)
    k(f"v_add_u32 v3, {HO}, v3")
    k("s_waitcnt lgkmcnt(0)")
    T_()
    k("s_barrier")
    T_()
    k(f"ds_read2_b64 v[8:11], v3 offset0:0 offset1:4")
    k(f"ds_read_b128 v[12:15], v1 offset:{XO}")
    L2 = k.label('x')
    k("s_cmp_lg_u32 s3, 0")
    k(f"s_cbranch_scc1 {L2}")
    k(f"ds_read2_b64 v[16:19], v3 offset0:128 offset1:132")
    k(f"ds_read_b128 v[20:23], v1 offset:{XO+1024}")
    k(f"s_add_u32 s36, s35, {64*256}")
    k(f"s_add_u32 s37, s34, {64*512}")
    k("s_waitcnt lgkmcnt(0)")
    k(f"buffer_store_dwordx4 v[16:19], v5, s[24:27], s36 offen {PST}")
    k(f"buffer_store_dwordx4 v[20:23], v127, s[20:23], s37 offen {PST}")
    k.place(L2)
    k("s_waitcnt lgkmcnt(1)")
    k(f"buffer_store_dwordx4 v[8:11], v5, s[24:27], s35 offen {PST}")
    k("s_waitcnt lgkmcnt(0)")
    k(f"buffer_store_dwordx4 v[12:15], v127, s[20:23], s34 offen {PST}")
    T_(); T_.flush(tv=1)
    k.place(Lend)
    k("s_endpgm")
    return k

class VQ:
    def __init__(self): self.q = []
    def issue(self, tag): self.q.append(tag); assert len(self.q) <= 63, "vmcnt overflow"
    def wait_for(self, pred):
        last = -1
        for i, t in enumerate(self.q):
            if pred(t): last = i
        if last < 0: return None
        n = len(self.q) - 1 - last
        self.q = self.q[last+1:]
        return n

class Sched:
    def __init__(self, k): self.k = k; self.lo = []
    def add(self, items): self.lo += items
    def pop(self, n):
        for _ in range(n):
            if not self.lo: return
            x = self.lo.pop(0)
            if callable(x): x()
            else: self.k(x)

def k4():
    STG = 12288; RING = 13; UOFF = 6144
    k = Kern('k4_up_kernel', 256, 256, STG*RING, vgpr=256, agpr=256)
    Lend = k.label('end')
    k(f"s_load_dwordx2 s[4:5], s[0:1], {KA_WS}")
    k(f"s_load_dwordx4 s[8:11], s[0:1], {KA_WG}")
    k(f"s_load_dwordx2 s[6:7], s[0:1], {KA_WD}")
    T = Stamps(k, 'k4'); T.real(); T()
    k("v_lshrrev_b32 v1, 6, v0")
    k("v_readfirstlane_b32 s3, v1")
    k("s_cmp_ge_u32 s2, 256")
    k(f"s_cbranch_scc1 {Lend}")
    if K4MAP == 0:
        k("s_and_b32 s28, s2, 7"); k("s_lshl_b32 s28, s28, 2"); k("s_bfe_u32 s29, s2, 0x20003")
        k("s_add_u32 s28, s28, s29"); k("s_lshr_b32 s29, s2, 5")
    else:
        k("s_and_b32 s28, s2, 3"); k("s_lshl_b32 s28, s28, 3"); k("s_bfe_u32 s29, s2, 0x30003")
        k("s_add_u32 s28, s28, s29"); k("s_and_b32 s29, s2, 4"); k("s_lshr_b32 s30, s2, 6"); k("s_add_u32 s29, s29, s30")
    AFR, NB, LA = 224, 4, 3
    VL, VD1, VD2, VBE, VBO, VB2, VCE, VCO, VL8 = 240, 241, 244, 247, 248, 249, 250, 251, 252
    k("s_and_b32 s41, s28, 1")
    k("v_and_b32 v1, 63, v0")
    k(f"v_lshlrev_b32 v{VL}, 4, v1")
    k(f"v_lshlrev_b32 v{VL8}, 3, v1")
    for i in range(3):
        k(f"v_add_u32 v2, {64*i}, v1")
        k(f"v_mul_u32_u24 v3, 43691, v2")
        k(f"v_lshrrev_b32 v3, 19, v3")
        k(f"v_mul_u32_u24 v4, 12, v3")
        k(f"v_sub_u32 v4, v2, v4")
        k(f"v_lshlrev_b32 v4, 4, v4")
        k(f"v_and_b32 v5, 4, v3")
        k(f"v_lshlrev_b32 v5, 3, v5")
        k(f"v_xor_b32 v4, v4, v5")
        k(f"v_mul_u32_u24 v3, 9216, v3")
        k(f"v_add_u32 v3, v3, v4")
        k(f"v_subrev_u32 v{VD1+i}, {1024*i}, v3")
    k("s_waitcnt lgkmcnt(0)")
    k("s_cmp_ge_u32 s3, 2")
    k("s_cselect_b32 s12, s10, s8")
    k("s_cselect_b32 s13, s11, s9")
    k(f"s_mov_b32 s14, {576*4608*2:#x}")
    k("s_mov_b32 s15, 0x20000")
    k("s_mul_i32 s31, s3, 3072")
    k("s_and_b32 s30, s3, 1")
    k("s_mul_i32 s33, s28, 288")
    k(f"s_mul_i32 s32, s30, {16*9216}")
    k("s_add_u32 s32, s32, s33")
    k("s_mul_i32 s42, s41, 96")
    k("s_add_u32 s32, s32, s42")
    k(f"s_mul_i32 s43, s30, {32*9216}")
    k("s_add_u32 s43, s43, s33")
    k("s_lshl_b32 s42, s42, 1")
    k("s_sub_u32 s42, 192, s42")
    k("s_add_u32 s43, s43, s42")
    k.srd(16, 4, WS_H2, SZ_X)
    k("s_lshl_b32 s34, s29, 4")
    k("s_lshl_b32 s35, s3, 2")
    k("s_add_u32 s34, s34, s35")
    k("s_mul_i32 s35, s34, 18432")
    q = VQ()
    def hreg(ks, nt):
        i = ks*4+nt
        return a(4*i, 4) if i < 64 else v(192 + 4*(i-64), 4)
    def dma_items(st):
        out = []
        if st < 18: sb, off, vd = 32, st*32*9216, VD1
        else: sb, off, vd = 43, (st-18)*64*9216, VD2
        for i in range(3):
            def f(i=i):
                if i == 0:
                    k(f"s_add_u32 m0, s31, {(st % RING)*STG}")
                    k(f"s_add_u32 s38, s{sb}, {off}")
                k(f"buffer_load_dwordx4 v{vd+i}, s[12:15], s38 offen offset:{1024*i} lds")
                q.issue(('w', st))
            out.append(f)
        return out
    def h_items(ks):
        out = []
        for nt in range(4):
            def f(nt=nt):
                k(f"s_add_u32 s39, s35, {nt*18432 + ks*1024}")
                k(f"buffer_load_dwordx4 {hreg(ks, nt)}, v{VL}, s[16:19], s39 offen")
                q.issue(('h', ks))
            out.append(f)
        return out
    PRE = K4PRE
    for st in range(PRE):
        for f in dma_items(st) + h_items(st): f()
    for i in range(3):
        k(f"v_add_u32 v2, {64*i}, v1")
        k(f"v_mul_u32_u24 v3, 43691, v2")
        k(f"v_lshrrev_b32 v3, 18, v3")
        k(f"v_mul_u32_u24 v4, 6, v3")
        k(f"v_sub_u32 v4, v2, v4")
        k(f"v_lshl_add_u32 v4, s41, 1, v4")
        k(f"v_subrev_u32 v5, 6, v4")
        k(f"v_min_u32 v4, v4, v5")
        k(f"v_mul_u32_u24 v3, 9216, v3")
        k(f"v_lshl_add_u32 v3, v4, 4, v3")
        k(f"v_subrev_u32 v{VD2+i}, {1024*i}, v3")
    k("v_bfe_u32 v2, v0, 2, 4")
    k("v_and_b32 v4, 3, v0")
    k("v_lshlrev_b32 v4, 3, v4")
    k("v_mul_u32_u24 v3, 96, v2")
    k(f"v_add_u32 v{VB2}, v3, v4")
    k("v_lshl_add_u32 v3, v3, 1, v4")
    k("v_and_b32 v5, 16, v0")
    k("v_lshlrev_b32 v5, 1, v5")
    k(f"v_add_u32 v{VBE}, v3, v5")
    k(f"v_sub_u32 v{VBO}, v3, v5")
    k.srd(20, 4, WS_P, SZ_P)
    k(f"s_mul_i32 s36, s34, {144*1024}")
    k(f"s_mul_i32 s37, s28, 4608")
    k("s_add_u32 s36, s36, s37")
    k("s_mul_i32 s37, s41, 1536")
    k("s_add_u32 s37, s37, s36")
    k("s_mul_i32 s40, s41, 2560")
    k("s_sub_u32 s40, s36, s40")
    k("s_add_u32 s40, s40, 3072")
    k("s_lshl_b32 s42, s41, 12")
    k("s_sub_u32 s36, s36, s42")
    k("s_add_u32 s36, s36, 4096")
    T()
    frs = []
    for ks in range(18):
        for t in range(6):
            for m in range(2): frs.append((ks, ks, t, m))
    for ks in range(18):
        for t in range(3):
            for m in range(2): frs.append((18 + ks//2, ks, 6+t, m))
    def accb(t, m): return 32*(t % 6) + 16*m
    def aread(fi):
        st, ks, t, m = frs[fi]
        out = []
        for hh in range(2):
            if t < 6: out.append(f"ds_read_b64_tr_b16 {v(AFR+4*(fi % NB)+2*hh,2)}, v{VCO if t & 1 else VCE} offset:{m*UOFF + 16*hh*192 + 32*t}")
            else: out.append(f"ds_read_b64_tr_b16 {v(AFR+4*(fi % NB)+2*hh,2)}, v{VCE} offset:{m*UOFF + ((ks & 1)*32+16*hh)*96 + 32*(t-6)}")
        return out
    NST = 27
    syncs = K4SYNC
    state = {'nd': PRE, 'nh': PRE, 'free': RING - 1}
    def enter(st):
        if st in syncs:
            nxt = min([x for x in syncs if x > st] + [NST])
            assert state['nd'] >= nxt and not any(getattr(f, 'st', 99) < nxt for f in vm), (st, nxt, state)
            n = q.wait_for(lambda t: t[0] == 'w' and t[1] < nxt)
            if n is not None: k(f"s_waitcnt vmcnt({n})")
            k("s_barrier")
            state['free'] = max(state['free'], st - 2 + RING)
        if st < 18:
            k(f"v_add_u32 v{VCE}, {(st % RING)*STG}, v{VBE}")
            k(f"v_add_u32 v{VCO}, {(st % RING)*STG}, v{VBO}")
        else:
            k(f"v_add_u32 v{VCE}, {(st % RING)*STG}, v{VB2}")
    def epi_pair(t0, sreg, soff):
        out = []
        for nt in range(4):
            for tt in range(2):
                gq, uq = accb(t0+tt, 0)+4*nt, accb(t0+tt, 1)+4*nt
                for r in range(4): out.append(f"v_mul_f32 v{gq+r}, v{gq+r}, v{uq+r}")
            d = accb(t0, 1)+4*nt
            for tt in range(2):
                gq = accb(t0+tt, 0)+4*nt
                out.append(f"v_cvt_pk_bf16_f32 v{d+2*tt}, v{gq}, v{gq+1}")
                out.append(f"v_cvt_pk_bf16_f32 v{d+2*tt+1}, v{gq+2}, v{gq+3}")
            def f(nt=nt, d=d):
                k(f"s_add_u32 s44, s{sreg}, {soff + nt*144*1024}" if not T.on else f"s_add_u32 s2, s{sreg}, {soff + nt*144*1024}" if False else f"s_add_u32 s30, s{sreg}, {soff + nt*144*1024}")
                k(f"buffer_store_dwordx4 {v(d,4)}, v{VL}, s[20:23], s{44 if not T.on else 30} offen {PST}")
                q.issue(('s', 0))
            out.append(f)
        return out
    def epi_single(t0):
        out = []
        for nt in range(4):
            gq, uq = accb(t0, 0)+4*nt, accb(t0, 1)+4*nt
            for r in range(4): out.append(f"v_mul_f32 v{gq+r}, v{gq+r}, v{uq+r}")
            out.append(f"v_cvt_pk_bf16_f32 v{uq}, v{gq}, v{gq+1}")
            out.append(f"v_cvt_pk_bf16_f32 v{uq+1}, v{gq+2}, v{gq+3}")
            out.append(f"s_add_u32 s33, s36, {nt*144*1024}")
            out.append(f"buffer_store_dwordx2 {v(uq,2)}, v{VL8}, s[20:23], s33 offen {PST}")
        return out
    vm = []
    S = Sched(k)
    def refill(st):
        while len(vm) < 8:
            if state['nh'] < 18 and state['nh'] <= state['nd'] - 1 and state['nh'] <= st + K4HLA:
                vm.extend(h_items(state['nh'])); state['nh'] += 1
            elif state['nd'] < NST and state['nd'] <= state['free'] and state['nd'] <= st + (K4HLA if state['nh'] < 18 else 99):
                it = dma_items(state['nd'])
                for f in it: f.st = state['nd']
                vm.extend(it); state['nd'] += 1
            else: break
    enter(0)
    for fi in range(LA):
        for x in aread(fi): k(x)
    lastks = -1
    for fi, (st, ks, t, m) in enumerate(frs):
        nx = fi + LA
        rd = []
        if nx < len(frs):
            if frs[nx][0] != frs[nx-1][0]:
                enter(frs[nx][0])
                if frs[nx][0] in (2, 4, 6, 8, 10, 12, 14, 16, 18, 20, 22, 24, 26) and T.on:
                    T(); k("s_waitcnt lgkmcnt(0)")
            rd = aread(nx)
        if st < 18 and t == 0 and m == 0:
            assert state['nh'] > ks
            while any(True for f in vm if getattr(f, 'hk', None) == ks): vm.pop(0)()
            n = q.wait_for(lambda tg: tg[0] == 'h' and tg[1] == ks)
            if n is not None: k(f"s_waitcnt vmcnt({n})")
        if fi == K4PFAT and PF:
            k.srd(24, 6, 0, 4608*576*2)
            k("s_lshl_b32 s6, s2, 2"); k("s_add_u32 s6, s6, s3"); k("s_lshl_b32 s6, s6, 12")
            k(f"v_lshl_add_u32 v253, v{VL}, 2, s6")
            k(f"v_add_u32 v254, {1024*4096}, v253")
            k("buffer_load_dword v253, v253, s[24:27], 0 offen"); q.issue(('pf', 0))
            k("buffer_load_dword v254, v254, s[24:27], 0 offen"); q.issue(('pf', 0))
        if fi == 216:
            for x in epi_pair(0, 37, 0) + epi_pair(2, 37, 1024):
                x() if callable(x) else k(x)
            S.add(epi_pair(4, 37, 2048))
        rem = min(LA - 1, len(frs) - 1 - fi)
        k(f"s_waitcnt lgkmcnt({2*rem})")
        for nt in range(4):
            c = accb(t, m) + 4*nt
            k(f"v_mfma_f32_16x16x32_bf16 {v(c,4)}, {v(AFR+4*(fi % NB),4)}, {hreg(ks,nt)}, {'0' if ks == 0 else v(c,4)}")
            if nt < 2 and rd: k(rd.pop(0))
            if nt == 2:
                refill(st)
                if vm and len(q.q) < 60: vm.pop(0)()
            if nt >= 2: S.pop(2 if nt == 3 else 1)
    assert state['nd'] == NST and not vm and not S.lo
    T()
    for x in epi_pair(6, 40, 0) + epi_single(8):
        x() if callable(x) else k(x)
    T.flush()
    k.place(Lend)
    k("s_endpgm")
    return k

def k5():
    STG = 36864; RING = 4
    k = Kern('k5_down_kernel', 256, 256, STG*RING, vgpr=236)
    Lend = k.label('end')
    k(f"s_load_dwordx2 s[4:5], s[0:1], {KA_WS}")
    k(f"s_load_dwordx2 s[8:9], s[0:1], {KA_WD}")
    T = Stamps(k, 'k5'); T.real(); T()
    k("v_lshrrev_b32 v1, 6, v0")
    k("v_readfirstlane_b32 s3, v1")
    k("s_cmp_ge_u32 s2, 256")
    k(f"s_cbranch_scc1 {Lend}")
    k("s_and_b32 s28, s2, 3")
    k("s_bfe_u32 s29, s2, 0x10002")
    k("s_lshl_b32 s29, s29, 3")
    k("s_bfe_u32 s30, s2, 0x30003")
    k("s_add_u32 s29, s29, s30")
    k("s_lshr_b32 s30, s2, 6")
    ACC, PB, AFR, VD, VL, VL8, VB, VC = 8, 80, 192, 216, 225, 226, 227, 228
    PD = 14; NB = 6; LA = 4
    k("v_and_b32 v1, 63, v0")
    k(f"v_lshlrev_b32 v{VL}, 4, v1")
    k(f"v_lshlrev_b32 v{VL8}, 3, v1")
    for i in range(9):
        k(f"v_add_u32 v2, {256*i}, v0")
        k(f"v_mul_u32_u24 v3, 3641, v2")
        k(f"v_lshrrev_b32 v3, 16, v3")
        k(f"v_mul_u32_u24 v4, 18, v3")
        k(f"v_sub_u32 v4, v2, v4")
        k(f"v_mul_u32_u24 v3, 1152, v3")
        k(f"v_lshl_add_u32 v{VD+i}, v4, 4, v3")
    k("s_waitcnt lgkmcnt(0)")
    k.srd(12, 8, 0, 4608*576*2)
    k.srd(16, 4, WS_P, SZ_P)
    k("s_lshl_b32 s31, s3, 10")
    k(f"s_mul_i32 s32, s28, {1152*1152}")
    k("s_mul_i32 s33, s30, 288")
    k("s_add_u32 s32, s32, s33")
    k("s_lshl_b32 s34, s29, 2")
    k("s_add_u32 s34, s34, s3")
    k(f"s_mul_i32 s35, s34, {288*1024}")
    k(f"s_mul_i32 s36, s28, {36*1024}")
    k("s_add_u32 s35, s35, s36")
    k(f"s_add_u32 s36, s35, {144*1024}")
    q = VQ()
    def preg(ks, nt): return PB + 8*(ks % PD) + 4*nt
    def dma_item(st, i):
        def f():
            k(f"s_add_u32 m0, s31, {(st % RING)*STG + 4096*i}")
            k(f"s_add_u32 s38, s32, {st*128*1152}")
            k(f"buffer_load_dwordx4 v{VD+i}, s[12:15], s38 offen lds")
            q.issue(('w', st*9+i))
        f.tag = ('w', st*9+i)
        return f
    def p_item(ks, nt):
        def f():
            k(f"s_add_u32 s39, s{35+nt}, {ks*1024}")
            if ks % 9 == 4:
                k(f"buffer_load_dwordx2 {v(preg(ks,nt),2)}, v{VL8}, s[16:19], s39 offen"); q.issue(('p', ks))
                k(f"buffer_load_dwordx2 {v(preg(ks,nt)+2,2)}, v{VL8}, s[16:19], s39 offen offset:512"); q.issue(('p', ks))
            else:
                k(f"buffer_load_dwordx4 {v(preg(ks,nt),4)}, v{VL}, s[16:19], s39 offen"); q.issue(('p', ks))
        f.tag = ('p', ks)
        return f
    order = []
    nw = 0
    def wneed(ks): return (ks // 4)*9 + (9*(ks % 4) + 8)//4
    for ks in range(36):
        while nw <= wneed(ks):
            order.append(dma_item(nw // 9, nw % 9)); nw += 1
        order += [p_item(ks, 0), p_item(ks, 1)]
    def can_issue(f, cur_ks, freest):
        if f.tag[0] == 'w': return f.tag[1] // 9 <= freest
        return f.tag[1] <= cur_ks + PD - 1
    freest = RING - 1
    npre = 0
    while order and order[0].tag != ('p', K5PRE): order.pop(0)()
    k("v_bfe_u32 v4, v0, 2, 4")
    k("v_mul_u32_u24 v4, 288, v4")
    k("v_and_b32 v5, 3, v0")
    k(f"v_lshl_add_u32 v{VB}, v5, 3, v4")
    k.srd(20, 4, WS_PART, SZ_PART)
    T()
    frs = [(ks, dt) for ks in range(36) for dt in range(9)]
    def aread(fi):
        ks, dt = frs[fi]
        return [f"ds_read_b64_tr_b16 {v(AFR+4*(fi % NB)+2*hh,2)}, v{VC} offset:{(32*(ks % 4)+16*hh)*288+32*dt}" for hh in range(2)]
    syncs = K5SYNC
    def enter(ks):
        nonlocal freest
        if ks in syncs:
            nxt = min([x for x in syncs if x > ks] + [36])
            need = wneed(nxt-1)
            while any(f.tag[0] == 'w' and f.tag[1] <= need for f in order):
                f = order.pop(0); assert can_issue(f, ks-1, freest), (ks, f.tag); f()
            n = q.wait_for(lambda t: t[0] == 'w' and t[1] <= need)
            if n is not None: k(f"s_waitcnt vmcnt({n})")
            k("s_barrier")
            freest = max(freest, (ks-1)//4 - 1 + RING)
        if ks % 4 == 0: k(f"v_add_u32 v{VC}, {((ks//4) % RING)*STG}, v{VB}")
    enter(0)
    for fi in range(LA):
        for x in aread(fi): k(x)
    for fi, (ks, dt) in enumerate(frs):
        nx = fi + LA
        rd = []
        if nx < len(frs):
            if frs[nx][1] == 0:
                enter(frs[nx][0])
                if T.on and frs[nx][0] % 2 == 0:
                    T(); k("s_waitcnt lgkmcnt(0)")
            rd = aread(nx)
        if dt == 0:
            assert not any(f.tag == ('p', ks) for f in order)
            n = q.wait_for(lambda t: t == ('p', ks))
            if n is not None: k(f"s_waitcnt vmcnt({n})")
        rem = min(LA - 1, len(frs)-1-fi)
        k(f"s_waitcnt lgkmcnt({2*rem})")
        for nt in range(2):
            c = ACC + 8*dt + 4*nt
            k(f"v_mfma_f32_16x16x32_bf16 {v(c,4)}, {v(AFR+4*(fi % NB),4)}, {v(preg(ks,nt),4)}, {'0' if ks == 0 else v(c,4)}")
            if rd: k(rd.pop(0))
        if dt in K5SLOTS and order and can_issue(order[0], ks if dt > 0 else ks-1, freest) and len(q.q) < 60:
            order.pop(0)()
    assert not order
    T()
    k("s_lshl_b32 s36, s28, 6")
    k("s_add_u32 s36, s36, s34")
    k("s_mul_i32 s36, s36, 36")
    k("s_mul_i32 s37, s30, 9")
    k("s_add_u32 s36, s36, s37")
    k("s_lshl_b32 s36, s36, 10")
    for dt in range(9):
        c = ACC + 8*dt; d = PB + 4*dt
        k(f"v_cvt_pk_bf16_f32 v{d}, v{c}, v{c+1}")
        k(f"v_cvt_pk_bf16_f32 v{d+1}, v{c+2}, v{c+3}")
        k(f"v_cvt_pk_bf16_f32 v{d+2}, v{c+4}, v{c+5}")
        k(f"v_cvt_pk_bf16_f32 v{d+3}, v{c+6}, v{c+7}")
    for dt in range(9):
        d = PB + 4*dt
        k(f"v_permlane16_swap_b32 v{d}, v{d+2}")
        k(f"v_permlane16_swap_b32 v{d+1}, v{d+3}")
        if dt % 4 == 0 and dt: k("s_add_u32 s36, s36, 4096")
        k(f"buffer_store_dwordx4 {v(d,4)}, v{VL}, s[20:23], s36 offen offset:{1024*(dt%4)} {PST}")
    T()
    T.flush()
    k.place(Lend)
    k("s_endpgm")
    return k

def k6():
    k = Kern('k6_fin_kernel', 576, 256, 0, vgpr=48)
    Lend = k.label('end')
    k(f"s_load_dwordx2 s[4:5], s[0:1], {KA_WS}")
    k(f"s_load_dwordx2 s[6:7], s[0:1], {KA_OUT}")
    k("s_cmp_ge_u32 s2, 576")
    k(f"s_cbranch_scc1 {Lend}")
    k("v_lshlrev_b32 v1, 4, v0")
    k("s_lshl_b32 s28, s2, 12")
    k("s_mul_i32 s29, s2, 7282")
    k("s_lshr_b32 s29, s29, 16")
    k("s_mul_i32 s30, s29, 9")
    k("s_sub_u32 s30, s2, s30")
    k("v_lshrrev_b32 v2, 5, v0")
    k("v_lshlrev_b32 v3, 5, v2")
    k("v_bfe_u32 v4, v0, 4, 1")
    k("v_and_b32 v5, 3, v0")
    k("v_lshl_add_u32 v4, v4, 2, v5")
    k("v_bfe_u32 v5, v0, 2, 2")
    k("v_lshl_add_u32 v4, v4, 5, v5")
    k(f"v_mul_u32_u24 v4, 1152, v4")
    k("v_lshl_add_u32 v4, v2, 4, v4")
    k("s_and_b32 s31, s29, 7")
    k("s_lshl_b32 s31, s31, 8")
    k("s_lshr_b32 s32, s29, 3")
    k("s_lshl_b32 s32, s32, 2")
    k("s_add_u32 s31, s31, s32")
    k("s_mul_i32 s31, s31, 1152")
    k("s_lshl_b32 s32, s30, 7")
    k("s_add_u32 s31, s31, s32")
    k("s_lshl_b32 s32, s30, 8")
    k(f"s_add_u32 s32, s32, {MOD6}")
    k("s_waitcnt lgkmcnt(0)")
    k.srd(8, 4, WS_PART, SZ_PART)
    k.srd(16, 4, WS_X1, SZ_X)
    k.srd(12, 4, WS_MOD, SZ_MOD)
    k.srd(20, 6, 0, SZ_X)
    k("buffer_load_dwordx4 v[24:27], v1, s[16:19], s28 offen")
    for sp in range(4):
        k(f"buffer_load_dwordx4 {v(8+4*sp,4)}, v1, s[8:11], s28 offen")
        if sp < 3: k(f"s_add_u32 s28, s28, {SZ_X}")
    k("buffer_load_dwordx4 v[28:31], v3, s[12:15], s32 offen")
    k("buffer_load_dwordx4 v[32:35], v3, s[12:15], s32 offen offset:16")
    k("s_waitcnt vmcnt(0)")
    for i in range(4):
        k(f"v_lshlrev_b32 v36, 16, v{8+i}")
        k(f"v_and_b32 v37, 0xffff0000, v{8+i}")
        for sp in range(1, 4):
            k(f"v_lshlrev_b32 v38, 16, v{8+4*sp+i}")
            k(f"v_and_b32 v39, 0xffff0000, v{8+4*sp+i}")
            k(f"v_add_f32 v36, v36, v38")
            k(f"v_add_f32 v37, v37, v39")
        k(f"v_lshlrev_b32 v38, 16, v{24+i}")
        k(f"v_and_b32 v39, 0xffff0000, v{24+i}")
        k(f"v_fmac_f32 v38, v36, v{28+2*i}")
        k(f"v_fmac_f32 v39, v37, v{28+2*i+1}")
        k(f"v_cvt_pk_bf16_f32 v{40+i}, v38, v39")
    k("buffer_store_dwordx4 v[40:43], v4, s[20:23], s31 offen")
    k.place(Lend)
    k("s_endpgm")
    return k

def kempty(n=256):
    k = Kern('k9_empty_kernel', n, 256, 0, vgpr=8)
    k("s_endpgm")
    return k

if __name__ == '__main__':
    ref = open(f'cdna_kernels/{NAME}.s.ref').read().split('\n')
    hdr = '\n'.join(l for l in ref[:13])
    ks = [k0(), k1(), k2(), k3(), k4(), k5(), k6()]
    import os
    la = list(ks)
    if os.environ.get('EMPTY'):
        e = kempty(); ks.append(e); la = la + [e]*int(os.environ['EMPTY'])
    txt = build(ks, hdr, la)
    out = sys.argv[1] if len(sys.argv) > 1 else f'cdna_kernels/{NAME}.s'
    open(out, 'w').write(txt)
    for x in ks: print(x.name, len(x.L), 'lines', x.nops, 'nops')
```

```python
import sys, struct
from asmlib import *

NAME = 'adaLN_cond__spectral_gfnet__glu_gated_bilinear__prompt'
KA_X, KA_WR, KA_WI, KA_BX, KA_WG, KA_WU, KA_WD, KA_C, KA_WM, KA_OUT, KA_DBG, KA_WS = [8*i for i in range(12)]
WS_MOD = 0;            SZ_MOD = 0x8000
WS_WT  = 0x100000;     SZ_WT = 320*8192
WS_T1  = 0x400000;     SZ_T = 320*8192
WS_T2  = 0x700000
WS_X1  = 0xA00000;     SZ_X = 2048*576*2
WS_H2  = 0xD00000
WS_P   = 0x1000000;    SZ_P = 2048*4608*2
WS_PART= 0x2400000;    SZ_PART = 4*2048*576*2

WS_DBG = 0x4000000
import os
STAMP = os.environ.get('STAMP', '')
class Stamps:
    def __init__(self, k, name, base=44, maxn=28):
        self.k = k; self.on = (STAMP == name); self.n = 0; self.base = base; self.maxn = maxn
        if self.on: k.sgpr = 102
    def __call__(self):
        if self.on and self.n < self.maxn:
            self.k(f"s_memtime s[{self.base+2*self.n}:{self.base+2*self.n+1}]"); self.n += 1
    def real(self):
        if self.on and self.n < self.maxn:
            self.k(f"s_memrealtime s[{self.base+2*self.n}:{self.base+2*self.n+1}]"); self.n += 1
    def flush(self, wsreg=4, wid=3, tv=0):
        if not self.on: return
        k = self.k
        k("s_waitcnt vmcnt(0) lgkmcnt(0)")
        self(); self.real()
        k("s_waitcnt lgkmcnt(0)")
        k.srd(8, wsreg, WS_DBG, 1 << 22)
        k("s_lshl_b32 s12, s2, 4")
        k(f"s_add_u32 s12, s12, s{wid}")
        k("s_lshl_b32 s12, s12, 7")
        k(f"v_mov_b32 v{tv+1}, 0")
        for i in range(self.n):
            k(f"v_mov_b32 v{tv}, s{self.base+2*i}")
            k(f"buffer_store_dword v{tv}, v{tv+1}, s[8:11], s12 offen offset:{4*i}")

E = os.environ.get
K4MAP = int(E('K4MAP', 1)); K4PRE = int(E('K4PRE', 5)); K4HLA = int(E('K4HLA', 7))
K4SYNC = eval(E('K4SYNC', '[0,1,2,3,4,6,8,10,12,14,16,18,21,24]'))
K5PRE = int(E('K5PRE', 4)); K5SYNC = eval(E('K5SYNC', '[0,1,2,3,4,6,8,10,12,14,16,18,20,22,24,26,28,30,32,34]'))
K5SLOTS = eval(E('K5SLOTS', '(0,1,2,4,5,6,7)'))
K4PFAT = int(E('K4PFAT', 150))
PST = E('PST', 'sc0 sc1')
def f2u(x): return struct.unpack('<I', struct.pack('<f', x))[0]

def dpp_allreduce16(k, r, t):
    for sh in (8, 4, 2, 1):
        k(f"v_add_f32_dpp {v(r)}, {v(r)}, {v(r)} row_ror:{sh} row_mask:0xf bank_mask:0xf")

def rnd_bf16(k, r):
    k(f"v_cvt_pk_bf16_f32 {v(r)}, {v(r)}, {v(r)}")
    k(f"v_lshlrev_b32 {v(r)}, 16, {v(r)}")

ST1 = E('ST1', '')
WT_ST = E('WT_ST', '')
PF = int(E('PF', 1))
MOD1, MOD3, MOD6 = 0, 4096, 16384
ALL = "s_mov_b64 exec, -1"
def execm(k, lo, hi):
    k(f"s_mov_b32 exec_lo, {lo:#x}"); k(f"s_mov_b32 exec_hi, {hi:#x}")

CPF = int(E('CPF', 3)); CPFW = int(E('CPFW', 16))
def code_pf(k, first, last_end, vd, nthr, nld, sd=84, wgs=None):
    L = k.label('cpf'); H = k.label('here')
    k(f"s_cmp_ge_u32 s2, {wgs or CPFW}")
    k(f"s_cbranch_scc1 {L}")
    k(f"s_getpc_b64 s[{sd}:{sd+1}]")
    k.place(H)
    k(f"s_add_u32 s{sd}, s{sd}, {first}-{H}")
    k(f"s_addc_u32 s{sd+1}, s{sd+1}, {'-1' if first == k.name else '0'}")
    k(f"s_mov_b32 s{sd+2}, {last_end}-{first}")
    k(f"s_mov_b32 s{sd+3}, 0x20000")
    k(f"v_lshlrev_b32 v{vd}, 6, v0")
    for i in range(nld):
        if i: k(f"v_add_u32 v{vd}, {nthr*64}, v{vd}")
        k(f"buffer_load_dword v{vd+1}, v{vd}, s[{sd}:{sd+3}], 0 offen")
    k.place(L)

def prefetch_gu(k, base, cnt, nwg, sd, pg, vtmp, lane64):
    if not PF: return 0
    k("s_bitcmp1_b32 s3, 0")
    k(f"s_cselect_b32 s{sd}, s{pg+2}, s{pg}")
    k(f"s_cselect_b32 s{sd+1}, s{pg+3}, s{pg+1}")
    k(f"s_cmp_lt_u32 s3, {2*cnt}")
    k(f"s_cselect_b32 s{sd+2}, {576*4608*2:#x}, 0")
    k(f"s_mov_b32 s{sd+3}, 0x20000")
    k(f"s_lshr_b32 s{pg}, s3, 1")
    k(f"s_mul_i32 s{pg}, s{pg}, {nwg}")
    k(f"s_add_u32 s{pg}, s{pg}, s2")
    k(f"s_add_u32 s{pg}, s{pg}, {base}")
    k(f"s_lshl_b32 s{pg}, s{pg}, 12")
    k(f"v_add_u32 v{vtmp}, s{pg}, v{lane64}")
    k(f"buffer_load_dword v{vtmp}, v{vtmp}, s[{sd}:{sd+3}], 0 offen")
    return 1

def k0():
    NMOD, NWT = 108, 160
    k = Kern('k0_prep_kernel', NMOD+NWT, 256, 2048, vgpr=76)
    Lwt, Lend = k.label('wt'), k.label('end')
    k(f"s_load_dwordx2 s[4:5], s[0:1], {KA_WS}")
    k(f"s_load_dwordx4 s[12:15], s[0:1], {KA_C}")
    k(f"s_load_dwordx2 s[6:7], s[0:1], {KA_X}")
    k(f"s_load_dwordx4 s[8:11], s[0:1], {KA_WR}")
    if CPF & 1: code_pf(k, 'k0_prep_kernel', 'k6_fin_kernel_eoc', 72, 256, 4)
    k(f"v_lshrrev_b32 v1, 6, v0")
    k(f"v_readfirstlane_b32 s3, v1")
    k(f"s_cmp_ge_u32 s2, {NMOD+NWT}")
    k(f"s_cbranch_scc1 {Lend}")
    k(f"s_cmp_ge_u32 s2, {NMOD}")
    k(f"s_cbranch_scc1 {Lwt}")
    k("v_and_b32 v1, 3, v0")
    k("v_lshrrev_b32 v2, 2, v0")
    k("v_mul_u32_u24 v3, 6912, v2")
    k("v_lshl_add_u32 v3, v1, 4, v3")
    k("v_lshlrev_b32 v4, 1, v2")
    k("s_lshl_b32 s28, s2, 6")
    k(f"s_waitcnt lgkmcnt(0)")
    k.srd(16, 14, 0, 576*3456*2)
    k.srd(20, 12, 0, 1152)
    for i in range(9):
        k(f"buffer_load_dwordx4 {v(8+4*i,4)}, v3, s[16:19], s28 offen")
        if i < 8: k(f"s_add_u32 s28, s28, {64*6912}")
    for i in range(9):
        k(f"buffer_load_ushort v{48+i}, v4, s[20:23], 0 offen offset:{128*i}")
    k.srd(24, 4, WS_MOD, SZ_MOD)
    k("s_mul_i32 s29, s2, 3641")
    k("s_lshr_b32 s29, s29, 16")
    k("s_mul_i32 s30, s29, 18")
    k("s_sub_u32 s30, s2, s30")
    k("s_lshl_b32 s30, s30, 5")
    k("v_and_b32 v68, 31, v0")
    k("v_add_u32 v68, s30, v68")
    k("s_cmp_lt_u32 s29, 2")
    k("s_cselect_b32 s31, 3, 4")
    k("s_lshl_b32 s32, s29, 2")
    k(f"s_lshr_b32 s32, 0x48004, s32")
    k("s_and_b32 s32, s32, 15")
    k("s_cmp_lt_u32 s29, 2")
    k(f"s_cselect_b32 s33, {MOD1}, {MOD3}")
    k("s_add_u32 s32, s32, s33")
    k("v_lshrrev_b32 v69, 1, v68")
    k("v_lshlrev_b32 v69, s31, v69")
    k("v_and_b32 v70, 1, v68")
    k("v_lshl_add_u32 v69, v70, 1, v69")
    k("v_lshlrev_b32 v68, 2, v68")
    k("s_cmp_eq_u32 s29, 1")
    k("s_cselect_b32 s30, 1.0, 0")
    k("s_cmp_eq_u32 s29, 4")
    k("s_cselect_b32 s30, 1.0, s30")
    for j in range(8): k(f"v_mov_b32 v{60+j}, 0")
    k("s_waitcnt vmcnt(0)")
    for i in range(9): k(f"v_lshlrev_b32 v{48+i}, 16, v{48+i}")
    T = (5, 6, 7, 57, 58, 59, 44, 45, 46)
    for i in range(9): k(f"v_mul_f32 v{T[i]}, {f2u(-1.4426950408889634):#x}, v{48+i}")
    for i in range(9): k(f"v_exp_f32 v{T[i]}, v{T[i]}")
    for i in range(9): k(f"v_add_f32 v{T[i]}, 1.0, v{T[i]}")
    for i in range(9): k(f"v_rcp_f32 v{T[i]}, v{T[i]}")
    for i in range(9): k(f"v_mul_f32 v{48+i}, v{48+i}, v{T[i]}")
    for i in range(9): k(f"v_cvt_pk_bf16_f32 v{48+i}, v{48+i}, v{48+i}")
    for i in range(9): k(f"v_lshlrev_b32 v{48+i}, 16, v{48+i}")
    for i in range(9):
        for j in range(4):
            k(f"v_lshlrev_b32 v5, 16, v{8+4*i+j}")
            k(f"v_and_b32 v6, 0xffff0000, v{8+4*i+j}")
            k(f"v_fmac_f32 v{60+2*j}, v5, v{48+i}")
            k(f"v_fmac_f32 v{60+2*j+1}, v6, v{48+i}")
    for sh in (4, 8):
        for j in range(8):
            k(f"v_add_f32_dpp v{60+j}, v{60+j}, v{60+j} row_ror:{sh} row_mask:0xf bank_mask:0xf")
    k("v_lshrrev_b32 v5, 4, v0")
    k("v_lshlrev_b32 v5, 7, v5")
    k("v_lshl_add_u32 v5, v1, 5, v5")
    k("ds_write_b128 v5, v[60:63]")
    k("ds_write_b128 v5, v[64:67] offset:16")
    k("s_waitcnt lgkmcnt(0)")
    k("s_barrier")
    k("s_cmp_lg_u32 s3, 0")
    k(f"s_cbranch_scc1 {Lend}")
    k("v_and_b32 v5, 31, v0")
    k("v_lshlrev_b32 v5, 2, v5")
    k("v_add_u32 v6, 1024, v5")
    for i in range(8):
        k(f"ds_read2_b32 {v(8+2*i,2)}, v5 offset0:{64*i} offset1:{64*i+32}" if 64*i+32 < 256 else f"ds_read2_b32 {v(8+2*i,2)}, v6 offset0:{64*i-256} offset1:{64*i+32-256}")
    k("s_waitcnt lgkmcnt(0)")
    for st in (8, 4, 2, 1):
        for i in range(st): k(f"v_add_f32 v{8+i}, v{8+i}, v{8+i+st}")
    rnd_bf16(k, 8)
    k("v_add_f32 v8, s30, v8")
    k("v_cvt_pk_bf16_f32 v9, v8, v8")
    execm(k, 0xffffffff, 0)
    Lg = k.label('gb')
    k("s_cmp_eq_u32 s29, 5")
    k(f"s_cbranch_scc1 {Lg}")
    k("buffer_store_short v9, v69, s[24:27], s32 offen")
    k("s_endpgm")
    k.place(Lg)
    k(f"s_movk_i32 s32, {MOD6}")
    k("buffer_store_dword v8, v68, s[24:27], s32 offen")
    k("s_endpgm")
    k.place(Lwt)
    k(f"s_sub_u32 s28, s2, {NMOD}")
    k("s_and_b32 s29, s28, 3")
    k("s_bfe_u32 s30, s28, 0x30002")
    k("s_lshr_b32 s31, s28, 5")
    k("v_and_b32 v1, 63, v0")
    k("v_lshlrev_b32 v60, 6, v1")
    k("s_lshl_b32 s32, s31, 6")
    k("v_add_u32 v1, s32, v1")
    k("v_min_u32 v2, 288, v1")
    k("v_mul_u32_u24 v4, 3641, v2")
    k("v_lshrrev_b32 v4, 16, v4")
    k("v_mul_u32_u24 v5, 18, v4")
    k("v_sub_u32 v5, v2, v5")
    k("v_lshl_add_u32 v4, v5, 5, v4")
    k(f"v_sub_u32 v6, {18*32+31}, v4")
    k("v_cmp_lt_u32 vcc, 9, v5")
    k("v_cndmask_b32 v3, v4, v6, vcc")
    k("v_cndmask_b32 v6, 1, -1, vcc")
    k("v_cndmask_b32 v7, 1.0, -1.0, vcc")
    k("v_mov_b32 v5, 1.0")
    k("v_and_b32 v4, 0xffef, v4")
    k("v_cmp_eq_u32 vcc, 0, v4")
    k("v_cndmask_b32 v5, v5, 0.5, vcc")
    k("v_cndmask_b32 v7, v7, 0.5, vcc")
    k("v_lshlrev_b32 v2, 1, v2")
    k("v_lshlrev_b32 v3, 13, v3")
    k("v_cmp_lt_u32 vcc, 288, v1")
    k("v_cndmask_b32 v3, v3, -1, vcc")
    k("v_and_b32 v3, 0x7ffffff0, v3")
    k("s_lshl_b32 s33, s29, 4")
    k("s_lshl_b32 s34, s3, 2")
    k("s_add_u32 s33, s33, s34")
    k("s_lshl_b32 s34, s30, 8")
    k("s_add_u32 s33, s33, s34")
    for r in range(4):
        for kk in range(4):
            a_ = 40 + kk*4 + r
            k(f"s_add_u32 s35, s33, {64*r+kk}")
            k(f"v_mul_i32_i24 v{a_}, s35, v6")
            k(f"v_and_b32 v{a_}, 2047, v{a_}")
            k(f"v_mul_u32_u24 v{a_}, 578, v{a_}")
            k(f"v_add_u32 v{a_}, v{a_}, v2")
    k(f"s_waitcnt lgkmcnt(0)")
    k.srd(16, 8, 0, 2048*578)
    k.srd(20, 10, 0, 2048*578)
    for i in range(16):
        k(f"buffer_load_ushort v{8+i}, v{40+i}, s[16:19], 0 offen")
        k(f"buffer_load_ushort v{24+i}, v{40+i}, s[20:23], 0 offen")
    if PF:
        k.srd(12, 6, 0, SZ_X)
        k("s_lshl_b32 s36, s28, 2")
        k("s_add_u32 s36, s36, s3")
        k("s_lshl_b32 s36, s36, 12")
        k("v_add_u32 v60, s36, v60")
        k("buffer_load_dword v60, v60, s[12:15], 0 offen")
    k.srd(24, 4, WS_WT, SZ_WT)
    k("s_lshl_b32 s34, s29, 11")
    k("s_lshl_b32 s35, s30, 8")
    k("s_add_u32 s34, s34, s35")
    k("s_lshl_b32 s35, s3, 6")
    k("s_add_u32 s34, s34, s35")
    for kk in range(4):
        k(f"s_waitcnt vmcnt({24-8*kk+kk+PF})")
        for i in range(4*kk, 4*kk+4):
            k(f"v_lshlrev_b32 v{8+i}, 16, v{8+i}")
            k(f"v_lshlrev_b32 v{24+i}, 16, v{24+i}")
            k(f"v_mul_f32 v{8+i}, v{8+i}, v5")
            k(f"v_mul_f32 v{24+i}, v{24+i}, v7")
            k(f"v_cvt_pk_bf16_f32 v{8+i}, v{8+i}, v{24+i}")
        k(f"buffer_store_dwordx4 {v(8+4*kk,4)}, v3, s[24:27], s34 offen offset:{16*kk} {WT_ST}")
    k.place(Lend)
    k("s_endpgm")
    return k

def red64(k, r, sd):
    for sh in (8, 4, 2, 1):
        k(f"v_add_f32_dpp v{r}, v{r}, v{r} row_ror:{sh} row_mask:0xf bank_mask:0xf")
    k(f"v_add_f32_dpp v{r}, v{r}, v{r} row_bcast:15 row_mask:0xa bank_mask:0xf")
    k(f"v_add_f32_dpp v{r}, v{r}, v{r} row_bcast:31 row_mask:0xc bank_mask:0xf")
    k(f"v_readlane_b32 s{sd}, v{r}, 63")

def ln_row(k, X, mean, rstd, t, sd, fill):
    def F(n):
        for _ in range(n):
            if fill: k(fill.pop(0))
    k(f"v_add_f32 v{mean}, v{X}, v{X+1}")
    k(f"v_add_f32 v{t}, v{X+2}, v{X+3}")
    k(f"v_add_f32 v{rstd}, v{X+4}, v{X+5}")
    k(f"v_add_f32 v{mean}, v{mean}, v{X+6}")
    k(f"v_add_f32 v{t}, v{t}, v{X+7}")
    k(f"v_add_f32 v{rstd}, v{rstd}, v{X+8}")
    k(f"v_add_f32 v{mean}, v{mean}, v{X+9}")
    k(f"v_add3_f32_x" if False else f"v_add_f32 v{t}, v{t}, v{rstd}")
    k(f"v_add_f32 v{mean}, v{mean}, v{t}")
    def red(r):
        F(2)
        for sh in (8, 4, 2, 1):
            k(f"v_add_f32_dpp v{r}, v{r}, v{r} row_ror:{sh} row_mask:0xf bank_mask:0xf"); F(2)
        k(f"v_add_f32_dpp v{r}, v{r}, v{r} row_bcast:15 row_mask:0xa bank_mask:0xf"); F(2)
        k(f"v_add_f32_dpp v{r}, v{r}, v{r} row_bcast:31 row_mask:0xc bank_mask:0xf"); F(1)
        k(f"v_readlane_b32 s{sd}, v{r}, 63"); F(2)
        k(f"v_mov_b32 v{r}, {f2u(1.0/576):#x}")
        k(f"v_mul_f32 v{r}, s{sd}, v{r}")
    red(mean)
    for i in range(8): k(f"v_sub_f32 v{X+i}, v{X+i}, v{mean}")
    k("s_mov_b32 exec_hi, 0")
    for i in (8, 9): k(f"v_sub_f32 v{X+i}, v{X+i}, v{mean}")
    k("s_mov_b32 exec_hi, -1")
    k(f"v_mul_f32 v{rstd}, v{X}, v{X}")
    k(f"v_mul_f32 v{t}, v{X+1}, v{X+1}")
    for i in range(2, 10, 2):
        k(f"v_fmac_f32 v{rstd}, v{X+i}, v{X+i}")
        k(f"v_fmac_f32 v{t}, v{X+i+1}, v{X+i+1}")
    k(f"v_add_f32 v{rstd}, v{rstd}, v{t}")
    k(f"v_cvt_pk_bf16_f32 v{t}, v{mean}, v{mean}")
    k(f"v_lshlrev_b32 v{t}, 16, v{t}")
    k(f"v_sub_f32 v{mean}, v{mean}, v{t}")
    red(rstd)
    rnd_bf16(k, rstd)
    k(f"v_add_f32 v{rstd}, {f2u(1e-5):#x}, v{rstd}")
    rnd_bf16(k, rstd)
    k(f"v_sqrt_f32 v{rstd}, v{rstd}")
    rnd_bf16(k, rstd)
    k(f"v_rcp_f32 v{rstd}, v{rstd}")
    F(99)
    k(f"v_mul_f32 v{mean}, v{mean}, v{rstd}")
    for i in range(10): k(f"v_fma_f32 v{X+i}, v{X+i}, v{rstd}, v{mean}")

def mf(k, acc, A, B, C):
    k(f"v_mfma_f32_16x16x32_bf16 {v(acc,4)}, {v(A,4)}, {v(B,4)}, {'0' if C is None else v(C,4)}")

def sincos(out, ang, c, s_):
    out.append(f"v_cos_f32 v{c}, v{ang}"); out.append(f"v_sin_f32 v{s_}, v{ang}")

KS = 1040
def k1():
    k = Kern('k1_rdft_kernel', 256, 512, 10*KS, vgpr=116)
    Lend = k.label('end')
    T_ = Stamps(k, 'k1'); T_.real(); T_()
    k(f"s_load_dwordx2 s[6:7], s[0:1], {KA_X}")
    k(f"s_load_dwordx2 s[4:5], s[0:1], {KA_WS}")
    k(f"s_load_dwordx4 s[24:27], s[0:1], {KA_WG}")
    if CPF & 2: code_pf(k, 'k1_rdft_kernel', 'k1_rdft_kernel_eoc', 112, 512, 1)
    k("v_lshrrev_b32 v1, 6, v0")
    k("v_readfirstlane_b32 s3, v1")
    k("s_cmp_ge_u32 s2, 256")
    k(f"s_cbranch_scc1 {Lend}")
    XR, MR, X, B1, TW, A20, A21, TMP, DA, AC, D2, EE, OU = 8, 14, 24, 36, 44, 60, 66, 76, 88, 96, 8, 24, 96
    k("s_and_b32 s28, s2, 15")
    k("s_lshl_b32 s28, s28, 1")
    k("s_bfe_u32 s29, s2, 0x10004")
    k("s_add_u32 s28, s28, s29")
    k("s_lshr_b32 s29, s2, 5")
    k("s_lshl_b32 s30, s29, 3")
    k("s_add_u32 s30, s30, s3")
    k("s_lshl_b32 s30, s30, 5")
    k("s_add_u32 s30, s30, s28")
    k("s_mul_i32 s30, s30, 1152")
    k("v_and_b32 v1, 63, v0")
    k("v_and_b32 v2, 15, v0")
    k("v_bfe_u32 v3, v0, 4, 2")
    k("v_lshlrev_b32 v4, 2, v1")
    k("v_lshlrev_b32 v5, 3, v1")
    k(f"v_mov_b32 v{XR+4}, 0"); k(f"v_mov_b32 v{MR+8}, 0"); k(f"v_mov_b32 v{MR+9}, 0")
    G = []
    G.append("v_cvt_f32_u32 v6, v2"); G.append("v_cvt_f32_u32 v7, v3")
    G.append(f"v_mul_f32 v{TMP+10}, {f2u(1.0/18):#x}, v6")
    for jj in range(5):
        G.append(f"v_add_f32 v{TMP+11}, {f2u(4.0*jj):#x}, v7")
        G.append(f"v_mul_f32 v{TMP+11}, v{TMP+11}, v{TMP+10}")
        sincos(G, TMP+11, TMP+jj, TMP+5+jj)
    G += [f"v_cvt_pk_bf16_f32 v{B1}, v{TMP}, v{TMP+1}", f"v_cvt_pk_bf16_f32 v{B1+1}, v{TMP+2}, v{TMP+3}", f"v_cvt_pk_bf16_f32 v{B1+2}, v{TMP+4}, 0", f"v_mov_b32 v{B1+3}, 0",
          f"v_cvt_pk_bf16_f32 v{B1+4}, -v{TMP+5}, -v{TMP+6}", f"v_cvt_pk_bf16_f32 v{B1+5}, -v{TMP+7}, -v{TMP+8}", f"v_cvt_pk_bf16_f32 v{B1+6}, -v{TMP+9}, 0", f"v_mov_b32 v{B1+7}, 0",
          f"v_mov_b32 v{DA+3}, 0", f"v_mov_b32 v{DA+7}, 0"]
    G.append(f"v_mul_f32 v7, 8.0, v7".replace('8.0', f"{f2u(8.0):#x}"))
    for t in range(2):
        for r in range(4):
            G.append(f"v_add_f32 v{TMP+11}, {f2u(2.0*r+t):#x}, v7")
            G.append(f"v_mul_f32 v{TMP+11}, v{TMP+11}, v6")
            G.append(f"v_mul_f32 v{TMP+10}, {f2u(1.0/576):#x}, v{TMP+11}")
            G.append(f"v_mul_f32 v{TMP+11}, {f2u(1.0/32):#x}, v{TMP+11}")
            sincos(G, TMP+10, TW+(4*t+r)*2, TW+(4*t+r)*2+1)
            sincos(G, TMP+11, TMP+r, TMP+4+r)
        d = A20 if t == 0 else A21
        G += [f"v_cvt_pk_bf16_f32 v{d+2}, v{TMP}, v{TMP+1}", f"v_cvt_pk_bf16_f32 v{d+3}, v{TMP+2}, v{TMP+3}",
              f"v_cvt_pk_bf16_f32 v{d+4}, v{TMP+4}, v{TMP+5}", f"v_cvt_pk_bf16_f32 v{d+5}, v{TMP+6}, v{TMP+7}",
              f"v_cvt_pk_bf16_f32 v{d}, -v{TMP+4}, -v{TMP+5}", f"v_cvt_pk_bf16_f32 v{d+1}, -v{TMP+6}, -v{TMP+7}"]
        if t: G += [f"v_cvt_pk_bf16_f32 v{d+6}, -v{TMP}, -v{TMP+1}", f"v_cvt_pk_bf16_f32 v{d+7}, -v{TMP+2}, -v{TMP+3}",
                    f"v_mov_b32 v{d+8}, v{d}", f"v_mov_b32 v{d+9}, v{d+1}"]
    NA = int(E('K1A', 70))
    for x in G[:NA]: k(x)
    k("s_waitcnt lgkmcnt(0)")
    T_()
    k.srd(8, 6, 0, SZ_X)
    k.srd(12, 4, WS_MOD, SZ_MOD)
    for j in range(4):
        k(f"buffer_load_dword v{XR+j}, v4, s[8:11], s30 offen offset:{256*j}")
    k("s_mov_b32 exec_hi, 0")
    k(f"buffer_load_dword v{XR+4}, v4, s[8:11], s30 offen offset:1024")
    k(f"buffer_load_dwordx2 {v(MR+8,2)}, v5, s[12:15], 0 offen offset:{MOD1+2048}")
    k("s_mov_b32 exec_hi, -1")
    for j in range(4):
        k(f"buffer_load_dwordx2 {v(MR+2*j,2)}, v5, s[12:15], 0 offen offset:{MOD1+512*j}")
    k("v_lshlrev_b32 v5, 6, v1")
    pf = prefetch_gu(k, 0, 2, 256, 16, 24, 5, 5)
    for x in G[NA:]: k(x)
    k.srd(20, 4, WS_T1, SZ_T)
    k(f"v_mul_u32_u24 v2, {KS}, v2")
    k("v_lshl_add_u32 v2, v3, 7, v2")
    k("s_lshl_b32 s31, s3, 2")
    k("v_add_u32 v2, s31, v2")
    k("v_lshlrev_b32 v4, 4, v1")
    k(f"s_mul_i32 s31, s3, {KS}")
    k("v_add_u32 v3, s31, v4")
    k("v_lshrrev_b32 v6, 1, v1")
    k("v_lshlrev_b32 v6, 13, v6")
    k("v_and_b32 v7, 16, v4")
    k("v_add_u32 v6, v6, v7")
    k("s_lshr_b32 s31, s28, 4"); k("s_lshl_b32 s31, s31, 12")
    k("s_and_b32 s32, s28, 15"); k("s_lshl_b32 s32, s32, 6"); k("s_add_u32 s31, s31, s32")
    k("s_lshr_b32 s32, s29, 1"); k("s_lshl_b32 s32, s32, 10"); k("s_add_u32 s31, s31, s32")
    k("s_and_b32 s32, s29, 1"); k("s_lshl_b32 s32, s32, 5"); k("s_add_u32 s31, s31, s32")
    k("s_add_u32 s32, s3, 1"); k("s_lshl_b32 s32, s32, 18"); k("s_add_u32 s32, s32, s31")
    T_()
    k(f"s_waitcnt vmcnt({5+pf})")
    T_()
    for j in range(5):
        k(f"v_lshlrev_b32 v{X+2*j}, 16, v{XR+j}")
        k(f"v_and_b32 v{X+2*j+1}, 0xffff0000, v{XR+j}")
    CA, SA = TMP, AC
    fill = [f"s_waitcnt vmcnt({pf})"]
    for j in range(5):
        fill += [f"v_lshlrev_b32 v{CA+2*j}, 16, v{MR+2*j}", f"v_and_b32 v{CA+2*j+1}, 0xffff0000, v{MR+2*j}",
                 f"v_lshlrev_b32 v{SA+2*j}, 16, v{MR+2*j+1}", f"v_and_b32 v{SA+2*j+1}, 0xffff0000, v{MR+2*j+1}"]
    ln_row(k, X, 34, 35, 7, 33, fill)
    for i in range(10): k(f"v_fma_f32 v{X+i}, v{X+i}, v{CA+i}, v{SA+i}")
    for t in range(2):
        k(f"v_cvt_pk_bf16_f32 v{DA+4*t}, v{X+t}, v{X+2+t}")
        k(f"v_cvt_pk_bf16_f32 v{DA+4*t+1}, v{X+4+t}, v{X+6+t}")
        k(f"v_cvt_pk_bf16_f32 v{DA+4*t+2}, v{X+8+t}, 0")
    T_()
    for t in range(2):
        mf(k, AC+8*t, DA+4*t, B1, None); mf(k, AC+8*t+4, DA+4*t, B1+4, None)
    for t in range(2):
        for r in range(4):
            re, im, c_, s_ = AC+8*t+r, AC+8*t+4+r, TW+(t*4+r)*2, TW+(t*4+r)*2+1
            k(f"v_mul_f32 v{TMP+r}, v{re}, v{c_}")
            k(f"v_mul_f32 v{TMP+4+r}, v{im}, v{c_}")
            k(f"v_fmac_f32 v{TMP+r}, v{im}, v{s_}")
            k(f"v_fma_f32 v{TMP+4+r}, -v{re}, v{s_}, v{TMP+4+r}")
        for i in range(4):
            k(f"v_cvt_pk_bf16_f32 v{D2+4*t+i}, v{TMP+2*i}, v{TMP+2*i+1}")
        if t == 0:
            mf(k, EE, A20+2, D2, None); mf(k, EE+4, A20, D2, None)
    mf(k, OU, A21+2, D2+4, EE); mf(k, OU+4, A21, D2+4, EE+4)
    mf(k, OU+8, A21+6, D2+4, EE); mf(k, OU+12, A21+4, D2+4, EE+4)
    execm(k, 0x03ff03ff, 0x03ff03ff)
    for u in range(2):
        for r in range(4):
            k(f"v_cvt_pk_bf16_f32 v{TMP+4*u+r}, v{OU+8*u+r}, v{OU+8*u+4+r}")
        for r in (0, 2):
            k(f"ds_write2_b32 v2, v{TMP+4*u+r}, v{TMP+4*u+r+1} offset0:{128*u+8*r} offset1:{128*u+8*r+8}")
    k(ALL)
    k("s_waitcnt lgkmcnt(0)")
    T_()
    k("s_barrier")
    T_()
    k(f"ds_read_b128 v[8:11], v3 offset:{KS}")
    L2 = k.label('x')
    k("s_cmp_ge_u32 s3, 2")
    k(f"s_cbranch_scc1 {L2}")
    k(f"s_mul_i32 s33, s3, {9*KS}")
    k("v_add_u32 v4, s33, v4")
    k("ds_read_b128 v[12:15], v4")
    k(f"s_mul_i32 s33, s3, {9<<18}")
    k("s_add_u32 s31, s31, s33")
    k("s_cmp_eq_u32 s3, 0")
    k("s_cselect_b32 exec_hi, 3, 0")
    k("s_waitcnt lgkmcnt(0)")
    k(f"buffer_store_dwordx4 v[12:15], v6, s[20:23], s31 offen {ST1}")
    k("s_mov_b32 exec_hi, -1")
    k.place(L2)
    k("s_waitcnt lgkmcnt(0)")
    k(f"buffer_store_dwordx4 v[8:11], v6, s[20:23], s32 offen {ST1}")
    T_(); T_.flush(tv=1)
    k.place(Lend)
    k("s_endpgm")
    return k

def k2():
    k = Kern('k2_sfft_kernel', 289, 256, 8192, vgpr=172)
    Lend = k.label('end')
    T = Stamps(k, 'k2'); T.real(); T()
    k(f"s_load_dwordx2 s[4:5], s[0:1], {KA_WS}")
    k(f"s_load_dwordx4 s[24:27], s[0:1], {KA_WG}")
    if CPF & 2: code_pf(k, 'k2_sfft_kernel', 'k2_sfft_kernel_eoc', 168, 256, 1)
    k("v_lshrrev_b32 v1, 6, v0")
    k("v_readfirstlane_b32 s3, v1")
    k("s_cmp_ge_u32 s2, 289")
    k(f"s_cbranch_scc1 {Lend}")
    k("s_cmp_lt_u32 s2, 17")
    k("s_cselect_b32 s35, 0, 15")
    k("s_add_u32 s35, s35, s2")
    k("s_lshl_b32 s28, s35, 13")
    k("s_lshl_b32 s30, s3, 11")
    k("s_add_u32 s29, s28, s30")
    k("s_add_u32 s31, s28, 4096")
    k("v_and_b32 v1, 15, v0")
    k("v_bfe_u32 v2, v0, 4, 2")
    k("v_lshlrev_b32 v3, 6, v1")
    k("v_lshl_add_u32 v3, v2, 4, v3")
    k("v_and_b32 v4, 63, v0")
    k("v_lshlrev_b32 v4, 4, v4")
    DIN, WW, F64, F32, TW1, TW2, ACC, TMP = 8, 40, 48, 80, 104, 120, 136, 152
    MN, M1, M2 = 164, 165, 166
    G = []
    G += ["s_lshl_b32 s32, s3, 4", "v_add_u32 v5, s32, v1", "v_cvt_f32_u32 v5, v5", "v_lshlrev_b32 v6, 2, v2", "v_cvt_f32_u32 v6, v6", "v_cvt_f32_u32 v7, v1"]
    def ang4(step, base, c, s_, cs=1):
        for j in range(4):
            a_ = base
            if j:
                G.append(f"v_fmamk_f32 v{TMP+10}, v{step}, {f2u(float(j)):#x}, v{base}"); a_ = TMP+10
            sincos(G, a_, c+cs*j, s_+cs*j)
    G += [f"v_mul_f32 v{TMP+8}, {f2u(1.0/64):#x}, v5", f"v_mul_f32 v{TMP+9}, v{TMP+8}, v6"]
    ang4(TMP+8, TMP+9, TMP, TMP+4)
    G += [f"v_bfe_i32 v{MN}, v1, 0, 1", f"v_bfe_i32 v{M1}, v1, 1, 1", f"v_and_b32 v{MN}, 0x80008000, v{MN}", f"v_and_b32 v{M1}, 0x80008000, v{M1}",
          f"v_xor_b32 v{M2}, v{M1}, v{MN}", f"v_cmp_ne_u32 vcc, 0, v{MN}"]
    for j in range(4):
        G += [f"v_cvt_pk_bf16_f32 v{F64+j}, v{TMP+j}, v{TMP+4+j}", f"v_cvt_pk_bf16_f32 v{F64+4+j}, -v{TMP+4+j}, v{TMP+j}"]
    for j in range(4):
        G += [f"v_cndmask_b32 v{F64+8+j}, v{F64+j}, v{F64+4+j}, vcc", f"v_cndmask_b32 v{F64+12+j}, v{F64+4+j}, v{F64+j}, vcc"]
    for j in range(4):
        G += [f"v_xor_b32 v{F64+8+j}, v{F64+8+j}, v{M1}", f"v_xor_b32 v{F64+12+j}, v{F64+12+j}, v{M2}"]
    for j in range(16): G.append(f"v_xor_b32 v{F64+16+j}, v{F64+j}, v{MN}")
    G += [f"v_mul_f32 v{TMP+8}, {f2u(1.0/2048):#x}, v5", f"v_mul_f32 v{TMP+9}, v{TMP+8}, v6"]
    ang4(TMP+8, TMP+9, TW1, TW1+1, 2)
    G.append(f"v_fmamk_f32 v{TMP+9}, v{TMP+8}, {f2u(16.0):#x}, v{TMP+9}")
    ang4(TMP+8, TMP+9, TW1+8, TW1+9, 2)
    G += [f"v_mul_f32 v{TMP+8}, {f2u(1.0/32):#x}, v7", f"v_mul_f32 v{TMP+9}, v{TMP+8}, v6"]
    ang4(TMP+8, TMP+9, TMP, TMP+4)
    G += [f"v_cvt_pk_bf16_f32 v{F32+2}, v{TMP}, v{TMP+1}", f"v_cvt_pk_bf16_f32 v{F32+3}, v{TMP+2}, v{TMP+3}",
          f"v_cvt_pk_bf16_f32 v{F32+4}, v{TMP+4}, v{TMP+5}", f"v_cvt_pk_bf16_f32 v{F32+5}, v{TMP+6}, v{TMP+7}",
          f"v_cvt_pk_bf16_f32 v{F32}, -v{TMP+4}, -v{TMP+5}", f"v_cvt_pk_bf16_f32 v{F32+1}, -v{TMP+6}, -v{TMP+7}"]
    for j in range(6): G.append(f"v_xor_b32 v{F32+6+j}, v{F32+j}, v{MN}")
    for j in range(12): G.append(f"v_xor_b32 v{F32+12+j}, 0x80000000, v{F32+j}")
    G += ["v_cvt_f32_u32 v5, s32", "v_add_f32 v5, v5, v6"]
    for nt in range(2):
        if nt: G.append(f"v_add_f32 v7, {f2u(16.0):#x}, v7")
        G += [f"v_mul_f32 v{TMP+8}, {f2u(1.0/2048):#x}, v7", f"v_mul_f32 v{TMP+9}, v{TMP+8}, v5"]
        ang4(TMP+8, TMP+9, TW2+8*nt, TW2+8*nt+1, 2)
    NA = int(E('K2A', 80))
    for x in G[:NA]: k(x)
    k("s_waitcnt lgkmcnt(0)")
    T()
    k.srd(8, 4, WS_T1, SZ_T)
    for t in range(4):
        for mt in range(2):
            k(f"buffer_load_dwordx4 {v(DIN+16*mt+4*t,4)}, v3, s[8:11], s{28 if mt == 0 else 31} offen offset:{1024*t}")
    k.srd(12, 4, WS_WT, SZ_WT)
    for mt in range(2):
        k(f"buffer_load_dwordx4 {v(WW+4*mt,4)}, v4, s[12:15], s29 offen offset:{1024*mt}")
    k("v_lshlrev_b32 v167, 2, v4")
    pf = prefetch_gu(k, 1024, 1, 0, 20, 24, 167, 167)
    for x in G[NA:]: k(x)
    k.srd(16, 4, WS_T2, SZ_T)
    k("v_lshrrev_b32 v3, 2, v1")
    k("v_lshl_add_u32 v3, v3, 4, v2")
    k("v_mul_u32_u24 v3, 20480, v3")
    k("v_and_b32 v1, 3, v1")
    k("v_lshl_add_u32 v3, v1, 4, v3")
    k(f"s_mul_i32 s33, s3, {4*20480}")
    k("s_lshl_b32 s34, s35, 6")
    k("s_add_u32 s33, s33, s34")
    k(f"s_add_u32 s34, s33, {64*20480}")
    k("v_add_u32 v5, s30, v4")
    T()
    RE = lambda m: m+2
    IM = lambda m: m
    for t in range(4):
        k(f"s_waitcnt vmcnt({2+pf+6-2*t})")
        if t == 0: T()
        for mt in range(2):
            mf(k, ACC+8*mt, DIN+16*mt+4*t, F64+8*t, ACC+8*mt if t else None)
            mf(k, ACC+8*mt+4, DIN+16*mt+4*t, F64+8*t+4, ACC+8*mt+4 if t else None)
    def twiddle(TW, dst, inter):
        for tl in range(2):
            for r in range(4):
                re, im, c_, s_ = ACC+8*tl+r, ACC+8*tl+4+r, TW+(tl*4+r)*2, TW+(tl*4+r)*2+1
                k(f"v_mul_f32 v{TMP+r}, v{re}, v{c_}")
                k(f"v_mul_f32 v{TMP+4+r}, v{im}, v{c_}")
                k(f"v_fmac_f32 v{TMP+r}, v{im}, v{s_}")
                k(f"v_fma_f32 v{TMP+4+r}, -v{re}, v{s_}, v{TMP+4+r}")
            for i in range(4):
                if inter: k(f"v_cvt_pk_bf16_f32 v{dst+4*tl+i}, v{TMP+i}, v{TMP+4+i}")
                else: k(f"v_cvt_pk_bf16_f32 v{dst+4*tl+i}, v{TMP+2*i}, v{TMP+2*i+1}")
            if inter: k(f"ds_write_b128 v5, {v(dst+4*tl,4)} offset:{1024*tl}")
    WF = DIN + 16
    k(f"s_waitcnt vmcnt({pf})")
    D2 = DIN
    twiddle(TW1, D2, False)
    AC2 = TW1
    for mt in range(2):
        for mo in range(2):
            mf(k, ACC+8*mo, RE(F32+6*(2*mo+mt)), D2+4*mt, ACC+8*mo if mt else None)
            mf(k, ACC+8*mo+4, IM(F32+6*(2*mo+mt)), D2+4*mt, ACC+8*mo+4 if mt else None)
            for i in range(4*mt+2*mo, 4*mt+2*mo+2):
                k(f"v_lshlrev_b32 v{WF+2*i}, 16, v{WW+i}")
                k(f"v_and_b32 v{WF+2*i+1}, 0xffff0000, v{WW+i}")
    T()
    D3 = DIN+8
    for tl in range(2):
        for r in range(4):
            re, im, wr, wi = ACC+8*tl+r, ACC+8*tl+4+r, WF+2*(4*tl+r), WF+2*(4*tl+r)+1
            k(f"v_mul_f32 v{TMP+r}, v{re}, v{wr}")
            k(f"v_mul_f32 v{TMP+4+r}, v{im}, v{wr}")
            k(f"v_fma_f32 v{TMP+r}, -v{im}, v{wi}, v{TMP+r}")
            k(f"v_fma_f32 v{TMP+4+r}, -v{re}, v{wi}, -v{TMP+4+r}")
        for i in range(4):
            k(f"v_cvt_pk_bf16_f32 v{D3+4*tl+i}, v{TMP+2*i}, v{TMP+2*i+1}")
    for mt in range(2):
        for nt in range(2):
            mf(k, ACC+8*nt, D3+4*mt, RE(F32+6*(2*nt+mt)), ACC+8*nt if mt else None)
            mf(k, ACC+8*nt+4, D3+4*mt, IM(F32+6*(2*nt+mt)), ACC+8*nt+4 if mt else None)
    twiddle(TW2, DIN+16, True)
    k("s_waitcnt lgkmcnt(0)")
    T()
    k("s_barrier")
    T()
    for nt in range(2):
        for t in range(4):
            k(f"ds_read_b128 {v(DIN+16*nt+4*t,4)}, v4 offset:{2048*t+1024*nt}")
    for nt in range(2):
        for t in range(4):
            if t % 2 == 0: k(f"s_waitcnt lgkmcnt({6-4*nt-t})")
            mf(k, ACC+8*nt, F64+8*t, DIN+16*nt+4*t, ACC+8*nt if t else None)
            mf(k, ACC+8*nt+4, F64+8*t+4, DIN+16*nt+4*t, ACC+8*nt+4 if t else None)
    for nt in range(2):
        for r in range(4):
            k(f"v_cvt_pk_bf16_f32 v{TMP+4*nt+r}, v{ACC+8*nt+r}, -v{ACC+8*nt+4+r}")
        k(f"buffer_store_dwordx4 {v(TMP+4*nt,4)}, v3, s[16:19], s{33+nt} offen {PST}")
    T(); T.flush(tv=1)
    k.place(Lend)
    k("s_endpgm")
    return k

def k3():
    RS = 1168; XO = 10*KS; HO = XO + 8*RS
    k = Kern('k3_irdft_kernel', 256, 512, HO + 8*RS, vgpr=128)
    Lend = k.label('end')
    T_ = Stamps(k, 'k3'); T_.real(); T_()
    k(f"s_load_dwordx2 s[4:5], s[0:1], {KA_WS}")
    k(f"s_load_dwordx2 s[6:7], s[0:1], {KA_X}")
    k(f"s_load_dwordx4 s[24:27], s[0:1], {KA_WG}")
    if CPF & 2: code_pf(k, 'k3_irdft_kernel', 'k3_irdft_kernel_eoc', 120, 512, 1)
    k("v_lshrrev_b32 v1, 6, v0")
    k("v_readfirstlane_b32 s3, v1")
    k("s_cmp_ge_u32 s2, 256")
    k(f"s_cbranch_scc1 {Lend}")
    XR, MR, DT, TA, TW, TB, TMP, AC, X = 8, 14, 32, 40, 64, 80, 88, 100, 116
    k("s_lshr_b32 s28, s2, 4"); k("s_lshl_b32 s28, s28, 3"); k("s_and_b32 s29, s2, 7"); k("s_add_u32 s28, s28, s29")
    k("s_bfe_u32 s29, s2, 0x10003")
    k("s_and_b32 s30, s28, 15"); k("s_lshl_b32 s30, s30, 2"); k("s_and_b32 s31, s3, 3"); k("s_add_u32 s30, s30, s31"); k("s_lshl_b32 s30, s30, 4")
    k("s_lshr_b32 s31, s28, 4"); k("s_lshl_b32 s31, s31, 1"); k("s_add_u32 s30, s30, s31"); k("s_add_u32 s30, s30, s29"); k("s_lshl_b32 s30, s30, 1")
    k("s_lshr_b32 s31, s3, 2"); k("s_add_u32 s30, s30, s31")
    k("s_mul_i32 s30, s30, 1152")
    k("s_mul_i32 s31, s28, 20480"); k("s_lshl_b32 s32, s29, 5"); k("s_add_u32 s31, s31, s32")
    k("s_add_u32 s33, s3, 1"); k("s_lshl_b32 s32, s33, 11"); k("s_add_u32 s32, s32, s31")
    k(f"s_mul_i32 s33, s33, {KS}")
    k("s_mov_b32 m0, s33")
    k("v_and_b32 v1, 63, v0")
    k("v_and_b32 v2, 15, v0")
    k("v_bfe_u32 v3, v0, 4, 2")
    k("v_lshlrev_b32 v4, 2, v1")
    k("v_lshlrev_b32 v5, 4, v1")
    k("v_lshlrev_b32 v6, 5, v1")
    k("v_and_b32 v7, 16, v5")
    k("v_sub_u32 v126, v6, v7")
    for r in [XR+4, MR+12, MR+13, MR+14] + list(range(DT, DT+8)): k(f"v_mov_b32 v{r}, 0")
    G = []
    G += ["v_cvt_f32_u32 v6, v2", "v_lshlrev_b32 v7, 2, v3", "v_cvt_f32_u32 v7, v7", "v_add_f32 v6, v6, v6", f"s_mov_b32 s40, {f2u(2.0/(576*2048)):#x}"]
    for t in range(2):
        if t: G.append("v_add_f32 v6, 1.0, v6")
        for r in range(4):
            G.append(f"v_add_f32 v{TMP+11}, {f2u(float(r)):#x}, v7")
            G.append(f"v_mul_f32 v{TMP+11}, v{TMP+11}, v6")
            G.append(f"v_mul_f32 v{TMP+10}, {f2u(1.0/576):#x}, v{TMP+11}")
            G.append(f"v_mul_f32 v{TMP+11}, {f2u(1.0/32):#x}, v{TMP+11}")
            sincos(G, TMP+10, TW+(4*t+r)*2, TW+(4*t+r)*2+1)
            sincos(G, TMP+11, TMP+r, TMP+4+r)
        for r in range(4):
            G += [f"v_cvt_pk_bf16_f32 v{TA+8*t+r}, v{TMP+r}, -v{TMP+4+r}", f"v_cvt_pk_bf16_f32 v{TA+8*t+4+r}, v{TMP+4+r}, v{TMP+r}"]
    for r in range(8): G.append(f"v_xor_b32 v{TA+16+r}, 0x80008000, v{TA+8+r}")
    for r in range(16): G.append(f"v_mul_f32 v{TW+r}, s40, v{TW+r}")
    G += ["v_and_b32 v6, 3, v2", f"v_lshrrev_b32 v{TMP+11}, 2, v2", f"v_lshl_add_u32 v6, v6, 2, v{TMP+11}", "v_cvt_f32_u32 v6, v6"]
    for ta in range(2):
        if ta: G.append(f"v_add_f32 v6, {f2u(16.0):#x}, v6")
        G += [f"v_mul_f32 v{TMP+8}, {f2u(1.0/18):#x}, v6", f"v_mul_f32 v{TMP+9}, v{TMP+8}, v7"]
        for j in range(4):
            a_ = TMP+9
            if j:
                G.append(f"v_fmamk_f32 v{TMP+10}, v{TMP+8}, {f2u(float(j)):#x}, v{TMP+9}"); a_ = TMP+10
            sincos(G, a_, TMP+j, TMP+4+j)
        G += [f"v_cvt_pk_bf16_f32 v{TB+4*ta}, v{TMP}, v{TMP+1}", f"v_cvt_pk_bf16_f32 v{TB+4*ta+1}, v{TMP+2}, v{TMP+3}",
              f"v_cvt_pk_bf16_f32 v{TB+4*ta+2}, -v{TMP+4}, -v{TMP+5}", f"v_cvt_pk_bf16_f32 v{TB+4*ta+3}, -v{TMP+6}, -v{TMP+7}"]
    NA = int(E('K3A', 60))
    for x in G[:NA]: k(x)
    k("s_waitcnt lgkmcnt(0)")
    T_()
    k.srd(16, 4, WS_T2, SZ_T)
    k("buffer_load_dwordx4 v126, s[16:19], s32 offen lds")
    L1 = k.label('x')
    k("s_cmp_ge_u32 s3, 2")
    k(f"s_cbranch_scc1 {L1}")
    k(f"s_mul_i32 s33, s3, {9*KS}")
    k("s_mov_b32 m0, s33")
    k(f"s_mul_i32 s33, s3, {9*2048}")
    k("s_add_u32 s33, s33, s31")
    k("buffer_load_dwordx4 v126, s[16:19], s33 offen lds")
    k.place(L1)
    k.srd(8, 6, 0, SZ_X)
    k.srd(12, 4, WS_MOD + MOD3, 288*16)
    for j in range(4):
        k(f"buffer_load_dword v{XR+j}, v4, s[8:11], s30 offen offset:{256*j}")
    k("s_mov_b32 exec_hi, 0")
    k(f"buffer_load_dword v{XR+4}, v4, s[8:11], s30 offen offset:1024")
    k("s_movk_i32 s33, 4096")
    k(f"buffer_load_dwordx3 {v(MR+12,3)}, v5, s[12:15], s33 offen")
    k("s_mov_b32 exec_hi, -1")
    MRJ = [MR, MR+4, MR+8, 122, MR+12]
    for j in range(4):
        k(f"buffer_load_dwordx3 {v(MRJ[j],3)}, v5, s[12:15], 0 offen offset:{1024*j}")
    k("v_lshlrev_b32 v126, 6, v1")
    pf = prefetch_gu(k, 512, 2, 256, 16, 24, 126, 126)
    for x in G[NA:]: k(x)
    k.srd(20, 4, WS_X1, SZ_X)
    k.srd(24, 4, WS_H2, SZ_X)
    k(f"v_mul_u32_u24 v2, {KS}, v2")
    k("v_lshl_add_u32 v2, v3, 7, v2")
    k("s_lshl_b32 s33, s3, 2")
    k("v_add_u32 v2, s33, v2")
    k(f"s_mul_i32 s33, s3, {RS}")
    k("v_add_u32 v4, s33, v4")
    T_()
    k(f"s_waitcnt vmcnt({10+pf})")
    k("s_barrier")
    T_()
    execm(k, 0x03ff03ff, 0x03ff03ff)
    k(f"ds_read2_b32 {v(DT,2)}, v2 offset0:0 offset1:8")
    k(f"ds_read2_b32 {v(DT+2,2)}, v2 offset0:16 offset1:24")
    execm(k, 0x01fe01fe, 0x01fe01fe)
    k(f"ds_read2_b32 {v(DT+4,2)}, v2 offset0:128 offset1:136")
    k(f"ds_read2_b32 {v(DT+6,2)}, v2 offset0:144 offset1:152")
    k("s_mov_b64 exec, 1")
    k(f"ds_read_b32 v{DT+4}, v2 offset:512")
    k(ALL)
    k("v_and_b32 v5, 7, v0")
    k("v_lshrrev_b32 v6, 3, v0")
    k(f"v_mul_u32_u24 v3, {RS}, v5")
    k("v_lshlrev_b32 v5, 4, v5")
    k("v_lshl_add_u32 v1, v6, 4, v3")
    k("v_and_b32 v7, 3, v6")
    k("v_lshlrev_b32 v7, 3, v7")
    k("v_sub_u32 v3, v1, v7")
    k("v_lshl_add_u32 v127, v6, 9, v5")
    k("v_lshl_add_u32 v5, v6, 8, v5")
    k("s_lshr_b32 s34, s28, 1"); k("s_mul_i32 s34, s34, 36864"); k("s_and_b32 s35, s28, 1"); k("s_lshl_b32 s35, s35, 8"); k("s_add_u32 s34, s34, s35")
    k("s_lshl_b32 s36, s29, 7"); k("s_add_u32 s34, s34, s36")
    k("s_mul_i32 s35, s28, 18432"); k("s_add_u32 s35, s35, s36")
    k("s_waitcnt lgkmcnt(3)")
    for t in range(2):
        mf(k, AC+8*t, DT, TA+8*t, None); mf(k, AC+8*t+4, DT, TA+8*t+4, None)
    k("s_waitcnt lgkmcnt(0)")
    for t in range(2):
        mf(k, AC+8*t, DT+4, TA+16*t, AC+8*t); mf(k, AC+8*t+4, DT+4, TA+16*t+4, AC+8*t+4)
    k(f"s_waitcnt vmcnt({pf})")
    GA = TA
    for j in range(5):
        k(f"v_lshlrev_b32 v{X+2*j if j < 3 else 26+2*j-6+0}, 16, v{XR+j}") if False else None
    XF = [116, 117, 118, 119, 120, 121, 28, 29, 30, 31]
    Y = TA
    for t in range(2):
        for r in range(4):
            re, im, c_, s_ = AC+8*t+r, AC+8*t+4+r, TW+(t*4+r)*2, TW+(t*4+r)*2+1
            k(f"v_mul_f32 v{TMP+r}, v{re}, v{c_}")
            k(f"v_mul_f32 v{TMP+4+r}, v{im}, v{c_}")
            k(f"v_fma_f32 v{TMP+r}, -v{im}, v{s_}, v{TMP+r}")
            k(f"v_fmac_f32 v{TMP+4+r}, v{re}, v{s_}")
        for i in range(4):
            k(f"v_cvt_pk_bf16_f32 v{DT+4*t+i}, v{TMP+2*i}, v{TMP+2*i+1}")
        mf(k, Y+8*t, TB, DT+4*t, None); mf(k, Y+8*t+4, TB+4, DT+4*t, None)
    T_()
    X = TW; GA = TMP
    for j in range(5):
        k(f"v_lshlrev_b32 v{X+2*j}, 16, v{XR+j}")
        k(f"v_and_b32 v{X+2*j+1}, 0xffff0000, v{XR+j}")
        k(f"v_lshlrev_b32 v{GA+2*j}, 16, v{MRJ[j]}")
        k(f"v_and_b32 v{GA+2*j+1}, 0xffff0000, v{MRJ[j]}")
    for t in range(2):
        for j in range(5): k(f"v_fmac_f32 v{X+2*j+t}, v{GA+2*j+t}, v{Y+8*t+j}")
    for j in range(5): k(f"v_cvt_pk_bf16_f32 v{XR+j}, v{X+2*j}, v{X+2*j+1}")
    def rowwrite(R, off):
        k(f"ds_write2st64_b32 v4, v{R}, v{R+1} offset0:0 offset1:1")
        k(f"ds_write2st64_b32 v4, v{R+2}, v{R+3} offset0:2 offset1:3")
        k("s_mov_b32 exec_hi, 0")
        k(f"ds_write_b32 v4, v{R+4} offset:1024")
        k("s_mov_b32 exec_hi, -1")
    k(f"v_add_u32 v4, {XO}, v4")
    for j in range(5):
        k(f"v_lshlrev_b32 v{X+2*j}, 16, v{XR+j}")
        k(f"v_and_b32 v{X+2*j+1}, 0xffff0000, v{XR+j}")
    rowwrite(XR, XO)
    CB, SB = TMP, AC
    fill = []
    for j in range(5):
        fill += [f"v_lshlrev_b32 v{CB+2*j}, 16, v{MRJ[j]+1}", f"v_and_b32 v{CB+2*j+1}, 0xffff0000, v{MRJ[j]+1}",
                 f"v_lshlrev_b32 v{SB+2*j}, 16, v{MRJ[j]+2}", f"v_and_b32 v{SB+2*j+1}, 0xffff0000, v{MRJ[j]+2}"]
    fill.append(f"v_add_u32 v4, {8*RS}, v4")
    ln_row(k, X, 74, 75, 76, 33, fill)
    for i in range(10): k(f"v_fma_f32 v{X+i}, v{X+i}, v{CB+i}, v{SB+i}")
    for j in range(5): k(f"v_cvt_pk_bf16_f32 v{DT+j}, v{X+2*j}, v{X+2*j+1}")
    rowwrite(DT, HO)
    k(f"v_add_u32 v3, {HO}, v3")
    k("s_waitcnt lgkmcnt(0)")
    T_()
    k("s_barrier")
    T_()
    k(f"ds_read2_b64 v[8:11], v3 offset0:0 offset1:4")
    k(f"ds_read_b128 v[12:15], v1 offset:{XO}")
    L2 = k.label('x')
    k("s_cmp_lg_u32 s3, 0")
    k(f"s_cbranch_scc1 {L2}")
    k(f"ds_read2_b64 v[16:19], v3 offset0:128 offset1:132")
    k(f"ds_read_b128 v[20:23], v1 offset:{XO+1024}")
    k(f"s_add_u32 s36, s35, {64*256}")
    k(f"s_add_u32 s37, s34, {64*512}")
    k("s_waitcnt lgkmcnt(0)")
    k(f"buffer_store_dwordx4 v[16:19], v5, s[24:27], s36 offen {PST}")
    k(f"buffer_store_dwordx4 v[20:23], v127, s[20:23], s37 offen {PST}")
    k.place(L2)
    k("s_waitcnt lgkmcnt(1)")
    k(f"buffer_store_dwordx4 v[8:11], v5, s[24:27], s35 offen {PST}")
    k("s_waitcnt lgkmcnt(0)")
    k(f"buffer_store_dwordx4 v[12:15], v127, s[20:23], s34 offen {PST}")
    T_(); T_.flush(tv=1)
    k.place(Lend)
    k("s_endpgm")
    return k

class VQ:
    def __init__(self): self.q = []
    def issue(self, tag): self.q.append(tag); assert len(self.q) <= 63, "vmcnt overflow"
    def wait_for(self, pred):
        last = -1
        for i, t in enumerate(self.q):
            if pred(t): last = i
        if last < 0: return None
        n = len(self.q) - 1 - last
        self.q = self.q[last+1:]
        return n

class Sched:
    def __init__(self, k): self.k = k; self.lo = []
    def add(self, items): self.lo += items
    def pop(self, n):
        for _ in range(n):
            if not self.lo: return
            x = self.lo.pop(0)
            if callable(x): x()
            else: self.k(x)

def k4():
    STG = 12288; RING = 13; UOFF = 6144
    k = Kern('k4_up_kernel', 256, 256, STG*RING, vgpr=256, agpr=256)
    Lend = k.label('end')
    k(f"s_load_dwordx2 s[4:5], s[0:1], {KA_WS}")
    k(f"s_load_dwordx4 s[8:11], s[0:1], {KA_WG}")
    k(f"s_load_dwordx2 s[6:7], s[0:1], {KA_WD}")
    T = Stamps(k, 'k4'); T.real(); T()
    if CPF & 2: code_pf(k, 'k4_up_kernel', 'k4_up_kernel_eoc', 254, 256, 2)
    k("v_lshrrev_b32 v1, 6, v0")
    k("v_readfirstlane_b32 s3, v1")
    k("s_cmp_ge_u32 s2, 256")
    k(f"s_cbranch_scc1 {Lend}")
    if K4MAP == 0:
        k("s_and_b32 s28, s2, 7"); k("s_lshl_b32 s28, s28, 2"); k("s_bfe_u32 s29, s2, 0x20003")
        k("s_add_u32 s28, s28, s29"); k("s_lshr_b32 s29, s2, 5")
    else:
        k("s_and_b32 s28, s2, 3"); k("s_lshl_b32 s28, s28, 3"); k("s_bfe_u32 s29, s2, 0x30003")
        k("s_add_u32 s28, s28, s29"); k("s_and_b32 s29, s2, 4"); k("s_lshr_b32 s30, s2, 6"); k("s_add_u32 s29, s29, s30")
    AFR, NB, LA = 224, 4, 3
    VL, VD1, VD2, VBE, VBO, VB2, VCE, VCO, VL8 = 240, 241, 244, 247, 248, 249, 250, 251, 252
    k("s_and_b32 s41, s28, 1")
    k("v_and_b32 v1, 63, v0")
    k(f"v_lshlrev_b32 v{VL}, 4, v1")
    k(f"v_lshlrev_b32 v{VL8}, 3, v1")
    for i in range(3):
        k(f"v_add_u32 v2, {64*i}, v1")
        k(f"v_mul_u32_u24 v3, 43691, v2")
        k(f"v_lshrrev_b32 v3, 19, v3")
        k(f"v_mul_u32_u24 v4, 12, v3")
        k(f"v_sub_u32 v4, v2, v4")
        k(f"v_lshlrev_b32 v4, 4, v4")
        k(f"v_and_b32 v5, 4, v3")
        k(f"v_lshlrev_b32 v5, 3, v5")
        k(f"v_xor_b32 v4, v4, v5")
        k(f"v_mul_u32_u24 v3, 9216, v3")
        k(f"v_add_u32 v3, v3, v4")
        k(f"v_subrev_u32 v{VD1+i}, {1024*i}, v3")
    k("s_waitcnt lgkmcnt(0)")
    k("s_cmp_ge_u32 s3, 2")
    k("s_cselect_b32 s12, s10, s8")
    k("s_cselect_b32 s13, s11, s9")
    k(f"s_mov_b32 s14, {576*4608*2:#x}")
    k("s_mov_b32 s15, 0x20000")
    k("s_mul_i32 s31, s3, 3072")
    k("s_and_b32 s30, s3, 1")
    k("s_mul_i32 s33, s28, 288")
    k(f"s_mul_i32 s32, s30, {16*9216}")
    k("s_add_u32 s32, s32, s33")
    k("s_mul_i32 s42, s41, 96")
    k("s_add_u32 s32, s32, s42")
    k(f"s_mul_i32 s43, s30, {32*9216}")
    k("s_add_u32 s43, s43, s33")
    k("s_lshl_b32 s42, s42, 1")
    k("s_sub_u32 s42, 192, s42")
    k("s_add_u32 s43, s43, s42")
    k.srd(16, 4, WS_H2, SZ_X)
    k("s_lshl_b32 s34, s29, 4")
    k("s_lshl_b32 s35, s3, 2")
    k("s_add_u32 s34, s34, s35")
    k("s_mul_i32 s35, s34, 18432")
    q = VQ()
    def hreg(ks, nt):
        i = ks*4+nt
        return a(4*i, 4) if i < 64 else v(192 + 4*(i-64), 4)
    def dma_items(st):
        out = []
        if st < 18: sb, off, vd = 32, st*32*9216, VD1
        else: sb, off, vd = 43, (st-18)*64*9216, VD2
        for i in range(3):
            def f(i=i):
                if i == 0:
                    k(f"s_add_u32 m0, s31, {(st % RING)*STG}")
                    k(f"s_add_u32 s38, s{sb}, {off}")
                k(f"buffer_load_dwordx4 v{vd+i}, s[12:15], s38 offen offset:{1024*i} lds")
                q.issue(('w', st))
            out.append(f)
        return out
    def h_items(ks):
        out = []
        for nt in range(4):
            def f(nt=nt):
                k(f"s_add_u32 s39, s35, {nt*18432 + ks*1024}")
                k(f"buffer_load_dwordx4 {hreg(ks, nt)}, v{VL}, s[16:19], s39 offen")
                q.issue(('h', ks))
            out.append(f)
        return out
    PRE = K4PRE
    for st in range(PRE):
        for f in dma_items(st) + h_items(st): f()
    for i in range(3):
        k(f"v_add_u32 v2, {64*i}, v1")
        k(f"v_mul_u32_u24 v3, 43691, v2")
        k(f"v_lshrrev_b32 v3, 18, v3")
        k(f"v_mul_u32_u24 v4, 6, v3")
        k(f"v_sub_u32 v4, v2, v4")
        k(f"v_lshl_add_u32 v4, s41, 1, v4")
        k(f"v_subrev_u32 v5, 6, v4")
        k(f"v_min_u32 v4, v4, v5")
        k(f"v_mul_u32_u24 v3, 9216, v3")
        k(f"v_lshl_add_u32 v3, v4, 4, v3")
        k(f"v_subrev_u32 v{VD2+i}, {1024*i}, v3")
    k("v_bfe_u32 v2, v0, 2, 4")
    k("v_and_b32 v4, 3, v0")
    k("v_lshlrev_b32 v4, 3, v4")
    k("v_mul_u32_u24 v3, 96, v2")
    k(f"v_add_u32 v{VB2}, v3, v4")
    k("v_lshl_add_u32 v3, v3, 1, v4")
    k("v_and_b32 v5, 16, v0")
    k("v_lshlrev_b32 v5, 1, v5")
    k(f"v_add_u32 v{VBE}, v3, v5")
    k(f"v_sub_u32 v{VBO}, v3, v5")
    k.srd(20, 4, WS_P, SZ_P)
    k(f"s_mul_i32 s36, s34, {144*1024}")
    k(f"s_mul_i32 s37, s28, 4608")
    k("s_add_u32 s36, s36, s37")
    k("s_mul_i32 s37, s41, 1536")
    k("s_add_u32 s37, s37, s36")
    k("s_mul_i32 s40, s41, 2560")
    k("s_sub_u32 s40, s36, s40")
    k("s_add_u32 s40, s40, 3072")
    k("s_lshl_b32 s42, s41, 12")
    k("s_sub_u32 s36, s36, s42")
    k("s_add_u32 s36, s36, 4096")
    T()
    frs = []
    for ks in range(18):
        for t in range(6):
            for m in range(2): frs.append((ks, ks, t, m))
    for ks in range(18):
        for t in range(3):
            for m in range(2): frs.append((18 + ks//2, ks, 6+t, m))
    def accb(t, m): return 32*(t % 6) + 16*m
    def aread(fi):
        st, ks, t, m = frs[fi]
        out = []
        for hh in range(2):
            if t < 6: out.append(f"ds_read_b64_tr_b16 {v(AFR+4*(fi % NB)+2*hh,2)}, v{VCO if t & 1 else VCE} offset:{m*UOFF + 16*hh*192 + 32*t}")
            else: out.append(f"ds_read_b64_tr_b16 {v(AFR+4*(fi % NB)+2*hh,2)}, v{VCE} offset:{m*UOFF + ((ks & 1)*32+16*hh)*96 + 32*(t-6)}")
        return out
    NST = 27
    syncs = K4SYNC
    state = {'nd': PRE, 'nh': PRE, 'free': RING - 1}
    def enter(st):
        if st in syncs:
            nxt = min([x for x in syncs if x > st] + [NST])
            assert state['nd'] >= nxt and not any(getattr(f, 'st', 99) < nxt for f in vm), (st, nxt, state)
            n = q.wait_for(lambda t: t[0] == 'w' and t[1] < nxt)
            if n is not None: k(f"s_waitcnt vmcnt({n})")
            k("s_barrier")
            state['free'] = max(state['free'], st - 2 + RING)
        if st < 18:
            k(f"v_add_u32 v{VCE}, {(st % RING)*STG}, v{VBE}")
            k(f"v_add_u32 v{VCO}, {(st % RING)*STG}, v{VBO}")
        else:
            k(f"v_add_u32 v{VCE}, {(st % RING)*STG}, v{VB2}")
    def epi_pair(t0, sreg, soff):
        out = []
        for nt in range(4):
            for tt in range(2):
                gq, uq = accb(t0+tt, 0)+4*nt, accb(t0+tt, 1)+4*nt
                for r in range(4): out.append(f"v_mul_f32 v{gq+r}, v{gq+r}, v{uq+r}")
            d = accb(t0, 1)+4*nt
            for tt in range(2):
                gq = accb(t0+tt, 0)+4*nt
                out.append(f"v_cvt_pk_bf16_f32 v{d+2*tt}, v{gq}, v{gq+1}")
                out.append(f"v_cvt_pk_bf16_f32 v{d+2*tt+1}, v{gq+2}, v{gq+3}")
            def f(nt=nt, d=d):
                k(f"s_add_u32 s44, s{sreg}, {soff + nt*144*1024}" if not T.on else f"s_add_u32 s2, s{sreg}, {soff + nt*144*1024}" if False else f"s_add_u32 s30, s{sreg}, {soff + nt*144*1024}")
                k(f"buffer_store_dwordx4 {v(d,4)}, v{VL}, s[20:23], s{44 if not T.on else 30} offen {PST}")
                q.issue(('s', 0))
            out.append(f)
        return out
    def epi_single(t0):
        out = []
        for nt in range(4):
            gq, uq = accb(t0, 0)+4*nt, accb(t0, 1)+4*nt
            for r in range(4): out.append(f"v_mul_f32 v{gq+r}, v{gq+r}, v{uq+r}")
            out.append(f"v_cvt_pk_bf16_f32 v{uq}, v{gq}, v{gq+1}")
            out.append(f"v_cvt_pk_bf16_f32 v{uq+1}, v{gq+2}, v{gq+3}")
            out.append(f"s_add_u32 s33, s36, {nt*144*1024}")
            out.append(f"buffer_store_dwordx2 {v(uq,2)}, v{VL8}, s[20:23], s33 offen {PST}")
        return out
    vm = []
    S = Sched(k)
    def refill(st):
        while len(vm) < 8:
            if state['nh'] < 18 and state['nh'] <= state['nd'] - 1 and state['nh'] <= st + K4HLA:
                vm.extend(h_items(state['nh'])); state['nh'] += 1
            elif state['nd'] < NST and state['nd'] <= state['free'] and state['nd'] <= st + (K4HLA if state['nh'] < 18 else 99):
                it = dma_items(state['nd'])
                for f in it: f.st = state['nd']
                vm.extend(it); state['nd'] += 1
            else: break
    enter(0)
    for fi in range(LA):
        for x in aread(fi): k(x)
    lastks = -1
    for fi, (st, ks, t, m) in enumerate(frs):
        nx = fi + LA
        rd = []
        if nx < len(frs):
            if frs[nx][0] != frs[nx-1][0]:
                enter(frs[nx][0])
                if frs[nx][0] in (2, 4, 6, 8, 10, 12, 14, 16, 18, 20, 22, 24, 26) and T.on:
                    T(); k("s_waitcnt lgkmcnt(0)")
            rd = aread(nx)
        if st < 18 and t == 0 and m == 0:
            assert state['nh'] > ks
            while any(True for f in vm if getattr(f, 'hk', None) == ks): vm.pop(0)()
            n = q.wait_for(lambda tg: tg[0] == 'h' and tg[1] == ks)
            if n is not None: k(f"s_waitcnt vmcnt({n})")
        if fi == K4PFAT and PF:
            k.srd(24, 6, 0, 4608*576*2)
            k("s_lshl_b32 s6, s2, 2"); k("s_add_u32 s6, s6, s3"); k("s_lshl_b32 s6, s6, 12")
            k(f"v_lshl_add_u32 v253, v{VL}, 2, s6")
            k(f"v_add_u32 v254, {1024*4096}, v253")
            k("buffer_load_dword v253, v253, s[24:27], 0 offen"); q.issue(('pf', 0))
            k("buffer_load_dword v254, v254, s[24:27], 0 offen"); q.issue(('pf', 0))
        if fi == 216:
            for x in epi_pair(0, 37, 0) + epi_pair(2, 37, 1024):
                x() if callable(x) else k(x)
            S.add(epi_pair(4, 37, 2048))
        rem = min(LA - 1, len(frs) - 1 - fi)
        k(f"s_waitcnt lgkmcnt({2*rem})")
        for nt in range(4):
            c = accb(t, m) + 4*nt
            k(f"v_mfma_f32_16x16x32_bf16 {v(c,4)}, {v(AFR+4*(fi % NB),4)}, {hreg(ks,nt)}, {'0' if ks == 0 else v(c,4)}")
            if nt < 2 and rd: k(rd.pop(0))
            if nt == 2:
                refill(st)
                if vm and len(q.q) < 60: vm.pop(0)()
            if nt >= 2: S.pop(2 if nt == 3 else 1)
    assert state['nd'] == NST and not vm and not S.lo
    T()
    for x in epi_pair(6, 40, 0) + epi_single(8):
        x() if callable(x) else k(x)
    T.flush()
    k.place(Lend)
    k("s_endpgm")
    return k

def k5():
    STG = 36864; RING = 4
    k = Kern('k5_down_kernel', 256, 256, STG*RING, vgpr=240)
    Lend = k.label('end')
    k(f"s_load_dwordx2 s[4:5], s[0:1], {KA_WS}")
    k(f"s_load_dwordx2 s[8:9], s[0:1], {KA_WD}")
    T = Stamps(k, 'k5'); T.real(); T()
    if CPF & 2: code_pf(k, 'k5_down_kernel', 'k5_down_kernel_eoc', 236, 256, 2)
    k("v_lshrrev_b32 v1, 6, v0")
    k("v_readfirstlane_b32 s3, v1")
    k("s_cmp_ge_u32 s2, 256")
    k(f"s_cbranch_scc1 {Lend}")
    k("s_and_b32 s28, s2, 3")
    k("s_bfe_u32 s29, s2, 0x10002")
    k("s_lshl_b32 s29, s29, 3")
    k("s_bfe_u32 s30, s2, 0x30003")
    k("s_add_u32 s29, s29, s30")
    k("s_lshr_b32 s30, s2, 6")
    ACC, PB, AFR, VD, VL, VL8, VB, VC = 8, 80, 192, 216, 225, 226, 227, 228
    PD = 14; NB = 6; LA = 4
    k("v_and_b32 v1, 63, v0")
    k(f"v_lshlrev_b32 v{VL}, 4, v1")
    k(f"v_lshlrev_b32 v{VL8}, 3, v1")
    for i in range(9):
        k(f"v_add_u32 v2, {256*i}, v0")
        k(f"v_mul_u32_u24 v3, 3641, v2")
        k(f"v_lshrrev_b32 v3, 16, v3")
        k(f"v_mul_u32_u24 v4, 18, v3")
        k(f"v_sub_u32 v4, v2, v4")
        k(f"v_mul_u32_u24 v3, 1152, v3")
        k(f"v_lshl_add_u32 v{VD+i}, v4, 4, v3")
    k("s_waitcnt lgkmcnt(0)")
    k.srd(12, 8, 0, 4608*576*2)
    k.srd(16, 4, WS_P, SZ_P)
    k("s_lshl_b32 s31, s3, 10")
    k(f"s_mul_i32 s32, s28, {1152*1152}")
    k("s_mul_i32 s33, s30, 288")
    k("s_add_u32 s32, s32, s33")
    k("s_lshl_b32 s34, s29, 2")
    k("s_add_u32 s34, s34, s3")
    k(f"s_mul_i32 s35, s34, {288*1024}")
    k(f"s_mul_i32 s36, s28, {36*1024}")
    k("s_add_u32 s35, s35, s36")
    k(f"s_add_u32 s36, s35, {144*1024}")
    q = VQ()
    def preg(ks, nt): return PB + 8*(ks % PD) + 4*nt
    def dma_item(st, i):
        def f():
            k(f"s_add_u32 m0, s31, {(st % RING)*STG + 4096*i}")
            k(f"s_add_u32 s38, s32, {st*128*1152}")
            k(f"buffer_load_dwordx4 v{VD+i}, s[12:15], s38 offen lds")
            q.issue(('w', st*9+i))
        f.tag = ('w', st*9+i)
        return f
    def p_item(ks, nt):
        def f():
            k(f"s_add_u32 s39, s{35+nt}, {ks*1024}")
            if ks % 9 == 4:
                k(f"buffer_load_dwordx2 {v(preg(ks,nt),2)}, v{VL8}, s[16:19], s39 offen"); q.issue(('p', ks))
                k(f"buffer_load_dwordx2 {v(preg(ks,nt)+2,2)}, v{VL8}, s[16:19], s39 offen offset:512"); q.issue(('p', ks))
            else:
                k(f"buffer_load_dwordx4 {v(preg(ks,nt),4)}, v{VL}, s[16:19], s39 offen"); q.issue(('p', ks))
        f.tag = ('p', ks)
        return f
    order = []
    nw = 0
    def wneed(ks): return (ks // 4)*9 + (9*(ks % 4) + 8)//4
    for ks in range(36):
        while nw <= wneed(ks):
            order.append(dma_item(nw // 9, nw % 9)); nw += 1
        order += [p_item(ks, 0), p_item(ks, 1)]
    def can_issue(f, cur_ks, freest):
        if f.tag[0] == 'w': return f.tag[1] // 9 <= freest
        return f.tag[1] <= cur_ks + PD - 1
    freest = RING - 1
    npre = 0
    while order and order[0].tag != ('p', K5PRE): order.pop(0)()
    k("v_bfe_u32 v4, v0, 2, 4")
    k("v_mul_u32_u24 v4, 288, v4")
    k("v_and_b32 v5, 3, v0")
    k(f"v_lshl_add_u32 v{VB}, v5, 3, v4")
    k.srd(20, 4, WS_PART, SZ_PART)
    T()
    frs = [(ks, dt) for ks in range(36) for dt in range(9)]
    def aread(fi):
        ks, dt = frs[fi]
        return [f"ds_read_b64_tr_b16 {v(AFR+4*(fi % NB)+2*hh,2)}, v{VC} offset:{(32*(ks % 4)+16*hh)*288+32*dt}" for hh in range(2)]
    syncs = K5SYNC
    def enter(ks):
        nonlocal freest
        if ks in syncs:
            nxt = min([x for x in syncs if x > ks] + [36])
            need = wneed(nxt-1)
            while any(f.tag[0] == 'w' and f.tag[1] <= need for f in order):
                f = order.pop(0); assert can_issue(f, ks-1, freest), (ks, f.tag); f()
            n = q.wait_for(lambda t: t[0] == 'w' and t[1] <= need)
            if n is not None: k(f"s_waitcnt vmcnt({n})")
            k("s_barrier")
            freest = max(freest, (ks-1)//4 - 1 + RING)
        if ks % 4 == 0: k(f"v_add_u32 v{VC}, {((ks//4) % RING)*STG}, v{VB}")
    enter(0)
    for fi in range(LA):
        for x in aread(fi): k(x)
    for fi, (ks, dt) in enumerate(frs):
        nx = fi + LA
        rd = []
        if nx < len(frs):
            if frs[nx][1] == 0:
                enter(frs[nx][0])
                if T.on and frs[nx][0] % 2 == 0:
                    T(); k("s_waitcnt lgkmcnt(0)")
            rd = aread(nx)
        if dt == 0:
            assert not any(f.tag == ('p', ks) for f in order)
            n = q.wait_for(lambda t: t == ('p', ks))
            if n is not None: k(f"s_waitcnt vmcnt({n})")
        rem = min(LA - 1, len(frs)-1-fi)
        k(f"s_waitcnt lgkmcnt({2*rem})")
        for nt in range(2):
            c = ACC + 8*dt + 4*nt
            k(f"v_mfma_f32_16x16x32_bf16 {v(c,4)}, {v(AFR+4*(fi % NB),4)}, {v(preg(ks,nt),4)}, {'0' if ks == 0 else v(c,4)}")
            if rd: k(rd.pop(0))
        if dt in K5SLOTS and order and can_issue(order[0], ks if dt > 0 else ks-1, freest) and len(q.q) < 60:
            order.pop(0)()
    assert not order
    T()
    k("s_lshl_b32 s36, s28, 6")
    k("s_add_u32 s36, s36, s34")
    k("s_mul_i32 s36, s36, 36")
    k("s_mul_i32 s37, s30, 9")
    k("s_add_u32 s36, s36, s37")
    k("s_lshl_b32 s36, s36, 10")
    for dt in range(9):
        c = ACC + 8*dt; d = PB + 4*dt
        k(f"v_cvt_pk_bf16_f32 v{d}, v{c}, v{c+1}")
        k(f"v_cvt_pk_bf16_f32 v{d+1}, v{c+2}, v{c+3}")
        k(f"v_cvt_pk_bf16_f32 v{d+2}, v{c+4}, v{c+5}")
        k(f"v_cvt_pk_bf16_f32 v{d+3}, v{c+6}, v{c+7}")
    for dt in range(9):
        d = PB + 4*dt
        k(f"v_permlane16_swap_b32 v{d}, v{d+2}")
        k(f"v_permlane16_swap_b32 v{d+1}, v{d+3}")
        if dt % 4 == 0 and dt: k("s_add_u32 s36, s36, 4096")
        k(f"buffer_store_dwordx4 {v(d,4)}, v{VL}, s[20:23], s36 offen offset:{1024*(dt%4)} {PST}")
    T()
    T.flush()
    k.place(Lend)
    k("s_endpgm")
    return k

def k6():
    k = Kern('k6_fin_kernel', 576, 256, 0, vgpr=48)
    Lend = k.label('end')
    k(f"s_load_dwordx2 s[4:5], s[0:1], {KA_WS}")
    k(f"s_load_dwordx2 s[6:7], s[0:1], {KA_OUT}")
    k("s_cmp_ge_u32 s2, 576")
    k(f"s_cbranch_scc1 {Lend}")
    k("v_lshlrev_b32 v1, 4, v0")
    k("s_lshl_b32 s28, s2, 12")
    k("s_mul_i32 s29, s2, 7282")
    k("s_lshr_b32 s29, s29, 16")
    k("s_mul_i32 s30, s29, 9")
    k("s_sub_u32 s30, s2, s30")
    k("v_lshrrev_b32 v2, 5, v0")
    k("v_lshlrev_b32 v3, 5, v2")
    k("v_bfe_u32 v4, v0, 4, 1")
    k("v_and_b32 v5, 3, v0")
    k("v_lshl_add_u32 v4, v4, 2, v5")
    k("v_bfe_u32 v5, v0, 2, 2")
    k("v_lshl_add_u32 v4, v4, 5, v5")
    k(f"v_mul_u32_u24 v4, 1152, v4")
    k("v_lshl_add_u32 v4, v2, 4, v4")
    k("s_and_b32 s31, s29, 7")
    k("s_lshl_b32 s31, s31, 8")
    k("s_lshr_b32 s32, s29, 3")
    k("s_lshl_b32 s32, s32, 2")
    k("s_add_u32 s31, s31, s32")
    k("s_mul_i32 s31, s31, 1152")
    k("s_lshl_b32 s32, s30, 7")
    k("s_add_u32 s31, s31, s32")
    k("s_lshl_b32 s32, s30, 8")
    k(f"s_add_u32 s32, s32, {MOD6}")
    k("s_waitcnt lgkmcnt(0)")
    k.srd(8, 4, WS_PART, SZ_PART)
    k.srd(16, 4, WS_X1, SZ_X)
    k.srd(12, 4, WS_MOD, SZ_MOD)
    k.srd(20, 6, 0, SZ_X)
    k("buffer_load_dwordx4 v[24:27], v1, s[16:19], s28 offen")
    for sp in range(4):
        k(f"buffer_load_dwordx4 {v(8+4*sp,4)}, v1, s[8:11], s28 offen")
        if sp < 3: k(f"s_add_u32 s28, s28, {SZ_X}")
    k("buffer_load_dwordx4 v[28:31], v3, s[12:15], s32 offen")
    k("buffer_load_dwordx4 v[32:35], v3, s[12:15], s32 offen offset:16")
    k("s_waitcnt vmcnt(0)")
    for i in range(4):
        k(f"v_lshlrev_b32 v36, 16, v{8+i}")
        k(f"v_and_b32 v37, 0xffff0000, v{8+i}")
        for sp in range(1, 4):
            k(f"v_lshlrev_b32 v38, 16, v{8+4*sp+i}")
            k(f"v_and_b32 v39, 0xffff0000, v{8+4*sp+i}")
            k(f"v_add_f32 v36, v36, v38")
            k(f"v_add_f32 v37, v37, v39")
        k(f"v_lshlrev_b32 v38, 16, v{24+i}")
        k(f"v_and_b32 v39, 0xffff0000, v{24+i}")
        k(f"v_fmac_f32 v38, v36, v{28+2*i}")
        k(f"v_fmac_f32 v39, v37, v{28+2*i+1}")
        k(f"v_cvt_pk_bf16_f32 v{40+i}, v38, v39")
    k("buffer_store_dwordx4 v[40:43], v4, s[20:23], s31 offen")
    k.place(Lend)
    k("s_endpgm")
    return k

def kempty(n=256):
    k = Kern('k9_empty_kernel', n, 256, 0, vgpr=8)
    k("s_endpgm")
    return k

if __name__ == '__main__':
    ref = open(f'cdna_kernels/{NAME}.s.ref').read().split('\n')
    hdr = '\n'.join(l for l in ref[:13])
    ks = [k0(), k1(), k2(), k3(), k4(), k5(), k6()]
    import os
    la = list(ks)
    if os.environ.get('EMPTY'):
        e = kempty(); ks.append(e); la = la + [e]*int(os.environ['EMPTY'])
    txt = build(ks, hdr, la)
    out = sys.argv[1] if len(sys.argv) > 1 else f'cdna_kernels/{NAME}.s'
    open(out, 'w').write(txt)
    for x in ks: print(x.name, len(x.L), 'lines', x.nops, 'nops')
```
